```python
import torch

def _softmax(x, axis=-1):
    return torch.softmax(x, dim=axis)
def _gelu(x):
    return torch.nn.functional.gelu(x, approximate="tanh")
def _silu(x):
    return torch.nn.functional.silu(x)
def _sigmoid(x):
    return torch.sigmoid(x)
def _layernorm(x, axis=-1, eps=1e-5):
    m = x.mean(dim=axis, keepdim=True)
    v = x.var(dim=axis, keepdim=True, unbiased=False)
    return (x - m) / torch.sqrt(v + eps)
def _scatter_add(tgt, idx, src, axis=0):
    return tgt.clone().index_add_(axis, idx, src)
def _segment_sum(src, seg, n):
    out = torch.zeros((n,) + src.shape[1:], dtype=src.dtype)
    return out.index_add_(0, seg, src)
def _pad(x, pw):
    flat = tuple(v for pair in reversed(pw) for v in pair)
    return torch.nn.functional.pad(x, flat)

kernel_name = 'parallel_sum__sliding_block_cached__dense_activation_silu__decode'

def setup_inputs():

    _w = (lambda a: (lambda t: t.to(torch.bfloat16) if t.is_floating_point() else t)(torch.as_tensor(a)))
    def _A_setup():
        B, Sq, D = 1, 1, 640
        Hq, Hkv, Sk, Dh = 32, 32, 8192, 128
        assert Hq % Hkv == 0, (Hq, Hkv)
        return {
            "x": _w((lambda *s: torch.randn(*s, dtype=torch.bfloat16) * 0.05)(B, Sq, D)),
            "k_cache": _w((lambda *s: torch.randn(*s, dtype=torch.bfloat16) * 3.2)(B, Hkv, Sk, Dh)),
            "v_cache": _w((lambda *s: torch.randn(*s, dtype=torch.bfloat16) * 0.8)(B, Hkv, Sk, Dh)),
            "wq": _w((lambda *s: torch.randn(*s, dtype=torch.bfloat16) * 3.2)(D, Hq * Dh) * (D ** -0.5)),
            "wo": _w((lambda *s: torch.randn(*s, dtype=torch.bfloat16) * 0.8)(Hq * Dh, D) * ((Hq * Dh) ** -0.5)),
        }
    _A_in = _A_setup()

    def _B_setup():
        B, S, D, F = 1, 1, 640, 1728
        return {
            "x": _w((lambda *s: torch.randn(*s, dtype=torch.bfloat16) * 0.05)(B, S, D)),
            "w1": _w((lambda *s: torch.randn(*s, dtype=torch.bfloat16) * 3.2)(D, F) * (D ** -0.5)),
            "w2": _w((lambda *s: torch.randn(*s, dtype=torch.bfloat16) * 0.2)(F, D) * (F ** -0.5)),
        }
    _B_in = _B_setup()

    return {
        "A_x": _A_in["x"],
        "A_k_cache": _A_in["k_cache"],
        "A_v_cache": _A_in["v_cache"],
        "A_wq": _A_in["wq"],
        "A_wo": _A_in["wo"],
        "B_x": _B_in["x"],
        "B_w1": _B_in["w1"],
        "B_w2": _B_in["w2"],
    }

def reference(A_x, A_k_cache, A_v_cache, A_wq, A_wo, B_x, B_w1, B_w2):
    def _A_ref(x, k_cache, v_cache, wq, wo):
        B, Sq, D = x.shape
        Hq, Dh = 32, 128
        Hkv, Sk = k_cache.shape[1], k_cache.shape[2]
        W = min(4096, max(256, Sk // 4))
        rep = Hq // Hkv
        q = (lambda x, *d: x.permute(*d))((x @ wq).reshape(B, Sq, Hq, Dh), 0, 2, 1, 3)
        k = (lambda x, n, axis: torch.repeat_interleave(x, n, dim=axis))(k_cache[:, :, Sk - W:, :], rep, axis=1)
        v = (lambda x, n, axis: torch.repeat_interleave(x, n, dim=axis))(v_cache[:, :, Sk - W:, :], rep, axis=1)
        scores = torch.einsum("bhqd,bhkd->bhqk", q, k) * (Dh ** -0.5)
        p = _softmax(scores, axis=-1)
        o = torch.einsum("bhqk,bhkd->bhqd", p, v)
        return (lambda x, *d: x.permute(*d))(o, 0, 2, 1, 3).reshape(B, Sq, Hq * Dh) @ wo

    def _B_ref(x, w1, w2):
        h = torch.einsum("bsd,df->bsf", x, w1)
        h = _silu(h)
        out = torch.einsum("bsf,fd->bsd", h, w2)
        return out

    x = A_x
    xn = _layernorm(x, axis=-1)
    return x + _A_ref(xn, A_k_cache, A_v_cache, A_wq, A_wo) + _B_ref(xn, B_w1, B_w2)
```

```python
NAME = 'parallel_sum__sliding_block_cached__dense_activation_silu__decode'
HEADER_PTRS = open('cdna_kernels/' + NAME + '.s.ref').read().split('; Override launch')[0]

class Asm:
    def __init__(self):
        self.lines = []
        self.uid = 0
    def __call__(self, s=''):
        for l in s.strip('\n').split('\n'):
            self.lines.append('    ' + l.strip() if not l.strip().endswith(':') else l.strip())
    def label(self, name):
        self.lines.append(name + ':')
    def newlabel(self, base='L'):
        self.uid += 1
        return '%s_%d' % (base, self.uid)
    def text(self):
        return '\n'.join(self.lines) + '\n'

def wrap(body, grid, block, lds, vgpr, sgpr=102, accum=None, extra_tail=''):
    accum = accum if accum is not None else min(256, (vgpr + 3) // 4 * 4)
    s = HEADER_PTRS
    s += '; @launch grid=(%d,1,1) block=(%d,1,1) lds=%d\n' % (grid, block, lds)
    s += '.amdgcn_target "amdgcn-amd-amdhsa--gfx950"\n.text\n'
    s += '.globl %s_kernel\n.p2align 8\n.type %s_kernel,@function\n%s_kernel:\n' % (NAME, NAME, NAME)
    s += body
    s += extra_tail
    s += '.section .rodata,"a"\n.p2align 6\n.amdhsa_kernel %s_kernel\n' % NAME
    s += '  .amdhsa_next_free_vgpr %d\n  .amdhsa_next_free_sgpr %d\n  .amdhsa_accum_offset %d\n' % (vgpr, sgpr, accum)
    s += '  .amdhsa_group_segment_fixed_size 0\n  .amdhsa_kernarg_size 88\n  .amdhsa_user_sgpr_count 2\n'
    s += '  .amdhsa_user_sgpr_kernarg_segment_ptr 1\n  .amdhsa_system_sgpr_workgroup_id_x 1\n'
    s += '  .amdhsa_float_denorm_mode_32 3\n'
    s += '.end_amdhsa_kernel\n'
    return s
```

```python
import re

def regs_of(tok):
    tok = tok.strip()
    neg = tok.lstrip('-')
    if neg.startswith('abs(') or neg.startswith('|'):
        neg = neg.strip('|')
        neg = neg.replace('abs(', '').rstrip(')')
    m = re.fullmatch(r'([vsa])\[(\d+):(\d+)\]', neg)
    if m: return {(m.group(1), i) for i in range(int(m.group(2)), int(m.group(3)) + 1)}
    m = re.fullmatch(r'([vsa])(\d+)', neg)
    if m: return {(m.group(1), int(m.group(2)))}
    if neg == 'vcc': return {('s', 106), ('s', 107)}
    if neg == 'vcc_lo': return {('s', 106)}
    if neg == 'vcc_hi': return {('s', 107)}
    if neg == 'exec': return {('s', 126), ('s', 127)}
    if neg == 'exec_lo': return {('s', 126)}
    if neg == 'exec_hi': return {('s', 127)}
    if neg == 'm0': return {('s', 124)}
    return set()

TRANS = ('v_exp_f32', 'v_log_f32', 'v_rcp_f32', 'v_rsq_f32', 'v_sqrt_f32', 'v_sin_f32', 'v_cos_f32')

class I:
    def __init__(self, text):
        self.text = text
        t = text.split(';')[0].strip()
        self.is_label = t.endswith(':')
        self.mn = t.split()[0] if t and not self.is_label else ''
        rest = t[len(self.mn):].strip() if self.mn else ''
        parts = []
        depth = 0; cur = ''
        for ch in rest:
            if ch == '[': depth += 1
            if ch == ']': depth -= 1
            if ch == ',' and depth == 0:
                parts.append(cur); cur = ''
            else: cur += ch
        if cur.strip(): parts.append(cur)
        ops = []
        for p in parts:
            ops.append(p.strip().split()[0] if p.strip() else '')
        self.ops = ops
        self.mods = t
        mn = self.mn
        self.valu = mn.startswith('v_') and not mn.startswith('v_mfma')
        self.mfma = mn.startswith('v_mfma')
        self.dpp = '_dpp' in mn or 'row_' in t or 'quad_perm' in t
        self.trans = any(mn.startswith(x) for x in TRANS)
        self.dot = mn.startswith('v_dot')
        self.vmem = mn.startswith('buffer_') or mn.startswith('global_')
        self.ds = mn.startswith('ds_')
        self.perml = mn.startswith('v_permlane')
        self.rl = mn.startswith('v_readlane') or mn.startswith('v_readfirstlane')
        d = set(); u = set()
        R = [regs_of(o) for o in ops]
        if self.valu or self.mfma:
            if mn.startswith('v_cmp'):
                d |= R[0]
                for r in R[1:]: u |= r
            elif self.perml:
                d |= R[0] | R[1]; u |= R[0] | R[1]
            elif mn.startswith(('v_add_co', 'v_sub_co', 'v_addc_co', 'v_subb_co')):
                d |= R[0] | R[1]
                for r in R[2:]: u |= r
            else:
                d |= R[0]
                for r in R[1:]: u |= r
                if mn.startswith(('v_fmac', 'v_dot2c', 'v_writelane', 'v_mac')) or self.dpp or 'sdwa' in mn: u |= R[0]
                if mn.startswith('v_cndmask') and len(ops) == 3: u |= regs_of('vcc')
        elif self.vmem:
            if 'load' in mn:
                d |= R[0]
                for r in R[1:]: u |= r
            else:
                for r in R: u |= r
        elif self.ds:
            if mn.startswith(('ds_read', 'ds_bpermute', 'ds_permute', 'ds_swizzle')):
                d |= R[0]
                for r in R[1:]: u |= r
            else:
                for r in R: u |= r
        elif mn.startswith('s_'):
            if mn.startswith(('s_cmp', 's_cbranch', 's_waitcnt', 's_nop', 's_barrier', 's_branch', 's_sleep', 's_setprio', 's_endpgm', 's_bitcmp')):
                for r in R: u |= r
            else:
                if R: d |= R[0]
                for r in R[1:]: u |= r
                if 'saveexec' in mn: d |= regs_of('exec'); u |= regs_of('exec')
        self.d = d; self.u = u
        self.states = 1
        if mn == 's_nop': self.states = int(ops[0], 0) + 1
        self.wide_store = self.vmem and 'store' in mn and ('x4' in mn or 'x3' in mn)
        self.srcC = R[3] if self.mfma else set()
        self.srcAB = (R[1] | R[2]) if self.mfma else set()
        self.dppsrc = R[1] if (self.dpp and self.valu and len(R) > 1) else set()

def isv(r): return r[0] in 'va'
def iss(r): return r[0] == 's'

def need(p, c):
    n = 0
    pv = {r for r in p.d if isv(r)}; ps = {r for r in p.d if iss(r)}
    if p.valu:
        if c.dpp and c.valu and pv & c.dppsrc: n = max(n, 2)
        if c.mfma and pv & c.u: n = max(n, 2)
        if c.rl and pv & c.u: n = max(n, 1)
        if c.perml and pv & c.u: n = max(n, 2)
        if p.trans and c.valu and not c.trans and pv & c.u: n = max(n, 1)
        if p.trans and c.trans and pv & c.u: n = max(n, 1)
        if p.dot and pv & (c.u | c.d):
            same = c.mn == p.mn
            if same and len(c.ops) > 3 and regs_of(c.ops[3]) == pv and not (pv & (regs_of(c.ops[1]) | regs_of(c.ops[2]))): pass
            else: n = max(n, 3)
        if ps:
            if c.valu and ps & c.u:
                n = max(n, 4 if (c.mn.startswith('v_readlane') or c.mn.startswith('v_writelane')) and len(c.ops) > 2 and ps & regs_of(c.ops[2]) else 2)
            if c.vmem and ps & c.u: n = max(n, 5)
            if c.mn.startswith('s_') and ps & c.u and not c.mn.startswith('s_cbranch'): n = max(n, 0)
        if 'sdwa' in p.mn and c.valu and pv & c.u: n = max(n, 1)
    if p.mfma:
        if c.mfma:
            if pv & c.srcAB: n = max(n, 8)
            if pv & c.srcC and not (pv == c.srcC): n = max(n, 6)
        elif (c.valu and pv & (c.u | c.d)) or ((c.vmem or c.ds) and pv & (c.u | c.d)): n = max(n, 8)
        if c.valu and p.srcC & c.d: n = max(n, 3)
    if p.wide_store:
        data = regs_of(p.ops[0])
        if c.valu and data & c.d: n = max(n, 2)
        elif (c.vmem or c.ds or c.mfma) and data & c.d: n = max(n, 1)
    return n

def fix(lines, window=12):
    out = []
    res = []
    for text in lines:
        s = text.strip()
        if not s or s.startswith(';') or s.startswith('.'):
            res.append(text); continue
        c = I(s)
        if c.is_label:
            res.append(text); continue
        dist = 0; pad = 0
        for p in reversed(out):
            if dist >= window: break
            n = need(p, c)
            if n > dist: pad = max(pad, n - dist)
            dist += p.states
        if pad:
            nop = '    s_nop %d' % (pad - 1)
            res.append(nop); out.append(I(nop.strip()))
        res.append(text); out.append(c)
    return res
```

```python
import sys
from asmlib import *
import hazard

FLAG_A, FLAG_Q, FLAG_P = 0, 16, 32
QL, ML, PL, APART, PVP, FIN = 64, 320, 512, 2048, 4096, 6144
LDS_BYTES = 10240
X1Q, X1H, X2, X3A, X3F, STAMP = 0x1000, 0x30000, 0x50000, 0x90000, 0xC0000, 0x100000
WS_RECORDS = 0x200000
TAGC = 0x9E3779B1
LOG2E = 0x3FB8AA3B
SCALE = 0x3DB504F3
INV640 = 0x3ACCCCCD
EPS = 0x3727C5AC
SPIN_LDS = 1 << 20
SPIN_MEM = 1 << 16

def gen(stamps=False, ntA='nt', ntK='nt', ntV='nt', ntD='nt', prio=(3, 2, 0), rot=True, st_flags='sc1', ld_flags='sc1', pollsleep=0):
    a = Asm()
    stamp_idx = [0]
    def stamp(k):
        if stamps: a('s_memrealtime s[%d:%d]' % (64 + 2 * k, 65 + 2 * k))
    def srd(r, lo, hi, rec):
        a('s_mov_b32 s%d, %s' % (r, lo)); a('s_mov_b32 s%d, %s' % (r + 1, hi))
        a('s_mov_b32 s%d, %s' % (r + 2, rec)); a('s_mov_b32 s%d, 0x20000' % (r + 3))
    def write_stamps():
        if not stamps: return
        a('s_waitcnt lgkmcnt(0)')
        a('s_mov_b64 exec, -1')
        a('v_mov_b32 v1, 0')
        for k in range(16):
            a('v_writelane_b32 v1, s%d, %d' % (64 + 2 * k, k))
        a('s_lshl_b32 s52, s2, 4')
        a('s_lshl_b32 s53, s26, 2')
        a('s_add_u32 s52, s52, s53')
        a('s_add_u32 s52, s52, s27')
        a('s_lshl_b32 s52, s52, 6')
        a('s_add_u32 s52, s52, %d' % STAMP)
        a('v_lshlrev_b32 v2, 2, v0')
        a('v_add_u32 v2, s52, v2')
        a('s_mov_b64 exec, 0xffff')
        a('buffer_store_dword v1, v2, s[32:35], 0 offen')
        a('s_waitcnt vmcnt(0)')
    def lds_wait(off, tmp, zero):
        L = a.newlabel('L_lw'); D = a.newlabel('L_lwd')
        a('s_mov_b32 s58, %d' % SPIN_LDS)
        a.label(L)
        a('ds_read_b128 v[%d:%d], v%d offset:%d' % (tmp, tmp + 3, zero, off))
        a('s_waitcnt lgkmcnt(0)')
        a('v_and_b32 v%d, v%d, v%d' % (tmp, tmp, tmp + 1))
        a('v_and_b32 v%d, v%d, v%d' % (tmp + 2, tmp + 2, tmp + 3))
        a('v_and_b32 v%d, v%d, v%d' % (tmp, tmp, tmp + 2))
        a('v_cmp_ne_u32 vcc, 0, v%d' % tmp)
        a('s_cbranch_vccnz %s' % D)
        a('s_sub_u32 s58, s58, 1')
        a('s_cbranch_scc1 %s' % D)
        a('s_sleep 1')
        a('s_branch %s' % L)
        a.label(D)
    def set_flag(off, zero, one):
        a('s_lshl_b32 s52, s27, 2')
        a('v_mov_b32 v%d, s52' % zero)
        a('v_mov_b32 v%d, 1' % one)
        a('ds_write_b32 v%d, v%d offset:%d' % (zero, one, off))
    def allreduce(op, v, t):
        for r in (8, 4, 2, 1):
            a('%s_dpp v%d, v%d, v%d row_ror:%d row_mask:0xf bank_mask:0xf' % (op, v, v, v, r))
        a('v_mov_b32 v%d, v%d' % (t, v))
        a('v_permlane16_swap_b32 v%d, v%d' % (v, t))
        a('%s v%d, v%d, v%d' % (op, v, v, t))
        a('v_mov_b32 v%d, v%d' % (t, v))
        a('v_permlane32_swap_b32 v%d, v%d' % (v, t))
        a('%s v%d, v%d, v%d' % (op, v, v, t))
    def masks(m, tmp, half_only_sreg=None, half_only=True):
        a('v_and_b32 v%d, 1, v0' % tmp)
        a('v_mov_b32 v%d, 0xffff' % (tmp + 1))
        a('v_lshlrev_b32 v%d, 4, v%d' % (tmp, tmp))
        a('v_lshlrev_b32 v%d, v%d, v%d' % (tmp + 1, tmp, tmp + 1))
        if half_only_sreg is not None:
            a('v_and_b32 v%d, %s, v0' % (tmp, half_only_sreg))
            a('v_cmp_eq_u32 vcc, 0, v%d' % tmp)
            a('v_cndmask_b32 v%d, 0, v%d, vcc' % (tmp + 1, tmp + 1))
        elif half_only:
            a('v_and_b32 v%d, 8, v0' % tmp)
            a('v_cmp_eq_u32 vcc, 0, v%d' % tmp)
            a('v_cndmask_b32 v%d, 0, v%d, vcc' % (tmp + 1, tmp + 1))
        a('v_bfe_u32 v%d, v0, 1, 2' % tmp)
        for r in range(4):
            a('v_cmp_eq_u32 vcc, %d, v%d' % (r, tmp))
            a('v_cndmask_b32 v%d, 0, v%d, vcc' % (m + r, tmp + 1))

    a('s_cmp_ge_u32 s2, 256')
    a('s_cbranch_scc1 L_end')
    stamp(0)
    a('s_load_dwordx16 s[4:19], s[0:1], 0')
    a('s_load_dwordx4 s[20:23], s[0:1], 64')
    a('s_load_dwordx2 s[24:25], s[0:1], 80')
    a('v_lshrrev_b32 v1, 6, v0')
    a('v_and_b32 v0, 63, v0')
    a('v_readfirstlane_b32 s26, v1')
    a('s_and_b32 s28, s2, 7')
    a('s_lshl_b32 s28, s28, 2')
    a('s_lshr_b32 s29, s2, 6')
    a('s_add_u32 s28, s28, s29')
    a('s_lshr_b32 s29, s2, 3')
    a('s_and_b32 s59, s29, 15')
    if not rot: a('s_mov_b32 s59, 0')
    a('s_lshl_b32 s59, s59, 12')
    a('s_and_b32 s29, s29, 7')
    a('s_sub_u32 s30, s29, 5')
    a('s_and_b32 s27, s26, 3')
    a('s_lshr_b32 s26, s26, 2')
    a('v_and_b32 v1, 15, v0')
    a('v_lshrrev_b32 v2, 4, v0')
    a('v_lshlrev_b32 v3, 4, v0')
    a('s_waitcnt lgkmcnt(0)')
    srd(32, 's24', 's25', WS_RECORDS)
    a('s_cmp_eq_u32 s26, 1')
    a('s_cbranch_scc1 L_B')
    a('s_cmp_eq_u32 s26, 2')
    a('s_cbranch_scc1 L_CD')

    a('s_setprio %d' % prio[0])
    a('buffer_load_dword v9, off, s[32:35], 0 sc1')
    srd(36, 's4', 's5', 1280)
    a('s_cmp_lt_u32 s29, 5')
    a('s_cbranch_scc0 L_A_ffn')
    a('s_lshl_b32 s52, s28, 8')
    a('s_add_u32 s40, s10, s52')
    a('s_addc_u32 s41, s11, 0')
    a('s_sub_u32 s42, 5242880, s52')
    a('s_mov_b32 s43, 0x20000')
    a('s_mov_b32 s53, 8192')
    a('s_mov_b32 s54, 4')
    a('s_lshl_b32 s55, s29, 7')
    a('s_lshl_b32 s52, s27, 5')
    a('s_add_u32 s55, s55, s52')
    a('s_mov_b32 s56, -1')
    a('s_mov_b32 s57, 0')
    a('s_mov_b32 s31, 8')
    a('s_mul_i32 s60, s28, 5')
    a('s_add_u32 s60, s60, s29')
    a('s_lshl_b32 s60, s60, 10')
    a('s_add_u32 s60, s60, %d' % X1Q)
    a('s_branch L_A_go')
    a.label('L_A_ffn')
    a('s_cmp_ge_u32 s28, 27')
    a('s_cbranch_scc1 L_A_none')
    a('s_lshl_b32 s52, s28, 7')
    a('s_add_u32 s40, s16, s52')
    a('s_addc_u32 s41, s17, 0')
    a('s_sub_u32 s42, 2211840, s52')
    a('s_mov_b32 s43, 0x20000')
    a('s_mov_b32 s53, 3456')
    a('s_mov_b32 s54, 3')
    a('s_lshl_b32 s55, s30, 8')
    a('s_lshl_b32 s52, s27, 6')
    a('s_add_u32 s55, s55, s52')
    a('s_mov_b32 s56, 0x00ff00ff')
    a('s_mov_b32 s57, 0xff00ff00')
    a('s_mov_b32 s31, 0')
    a('s_mul_i32 s60, s28, 3')
    a('s_add_u32 s60, s60, s30')
    a('s_lshl_b32 s60, s60, 10')
    a('s_add_u32 s60, s60, %d' % X1H)
    a.label('L_A_go')
    a('v_lshrrev_b32 v14, s54, v0')
    a('s_lshl_b32 s52, 1, s54')
    a('s_sub_u32 s52, s52, 1')
    a('v_and_b32 v15, s52, v0')
    a('v_lshlrev_b32 v14, 3, v14')
    a('v_add_u32 v14, s55, v14')
    a('v_mul_lo_u32 v88, v14, s53')
    a('v_lshlrev_b32 v15, 4, v15')
    a('v_add_u32 v88, v88, v15')
    a('v_lshlrev_b32 v14, 1, v14')
    a('v_lshlrev_b32 v15, 2, v0')
    a('buffer_load_dwordx4 v[4:7], v3, s[36:39], 0 offen')
    a('buffer_load_dword v8, v15, s[36:39], 0 offen offset:1024')
    a('buffer_load_dwordx4 v[10:13], v14, s[36:39], 0 offen')
    a('s_mov_b32 s52, 0')
    for i in range(8):
        a('buffer_load_dwordx4 v[%d:%d], v88, s[40:43], s52 offen %s' % (16 + 4 * i, 19 + 4 * i, ntA))
        if i < 7: a('s_add_u32 s52, s52, s53')
    stamp(1)
    a('v_mov_b32 v89, 0')
    a('ds_write_b32 v15, v89')
    a('s_waitcnt lgkmcnt(0)')
    a('s_barrier')
    masks(80, 90, half_only_sreg='s31')
    a('s_waitcnt vmcnt(8)')
    stamp(2)
    a('v_add_u32 v9, 0x%x, v9' % TAGC)
    for k in range(4):
        a('v_lshlrev_b32 v%d, 16, v%d' % (90 + 2 * k, 4 + k))
        a('v_and_b32 v%d, 0xffff0000, v%d' % (91 + 2 * k, 4 + k))
    a('v_lshlrev_b32 v98, 16, v8')
    a('v_and_b32 v99, 0xffff0000, v8')
    a('v_add_f32 v100, v90, v91'); a('v_add_f32 v101, v92, v93'); a('v_add_f32 v102, v94, v95'); a('v_add_f32 v103, v96, v97'); a('v_add_f32 v104, v98, v99')
    a('v_add_f32 v100, v100, v101'); a('v_add_f32 v102, v102, v103'); a('v_add_f32 v100, v100, v104'); a('v_add_f32 v100, v100, v102')
    allreduce('v_add_f32', 100, 101)
    a('v_mul_f32 v100, 0x%x, v100' % INV640)
    for k in range(10):
        a('v_sub_f32 v%d, v%d, v100' % (90 + k, 90 + k))
    a('v_mul_f32 v101, v90, v90')
    a('v_mul_f32 v102, v91, v91')
    for k in range(2, 10, 2):
        a('v_fmac_f32 v101, v%d, v%d' % (90 + k, 90 + k))
        a('v_fmac_f32 v102, v%d, v%d' % (91 + k, 91 + k))
    a('v_add_f32 v101, v101, v102')
    allreduce('v_add_f32', 101, 102)
    a('v_mul_f32 v101, 0x%x, v101' % INV640)
    a('v_cvt_pk_bf16_f32 v102, v100, v101')
    a('v_lshlrev_b32 v100, 16, v102')
    a('v_and_b32 v101, 0xffff0000, v102')
    a('v_add_f32 v101, 0x%x, v101' % EPS)
    a('v_cvt_pk_bf16_f32 v101, v101, v101')
    a('v_and_b32 v101, 0xffff0000, v101')
    a('v_sqrt_f32 v101, v101')
    a('v_cvt_pk_bf16_f32 v101, v101, v101')
    a('v_and_b32 v101, 0xffff0000, v101')
    a('v_rcp_f32 v101, v101')
    for k in range(4):
        a('v_lshlrev_b32 v%d, 16, v%d' % (90 + 2 * k, 10 + k))
        a('v_and_b32 v%d, 0xffff0000, v%d' % (91 + 2 * k, 10 + k))
    for k in range(8): a('v_sub_f32 v%d, v%d, v100' % (90 + k, 90 + k))
    for k in range(8): a('v_cvt_pk_bf16_f32 v%d, v%d, v%d' % (90 + k, 90 + k, 90 + k))
    for k in range(8): a('v_and_b32 v%d, 0xffff0000, v%d' % (90 + k, 90 + k))
    for k in range(8): a('v_mul_f32 v%d, v%d, v101' % (90 + k, 90 + k))
    for k in range(8): a('v_cvt_pk_bf16_f32 v%d, v%d, v%d' % (90 + k, 90 + k, 90 + k))
    for k in range(8):
        for r in range(4):
            a('v_and_b32 v%d, v%d, v%d' % (48 + 4 * k + r, 90 + k, 80 + r))
    stamp(3)
    for i in range(8):
        a('s_waitcnt vmcnt(%d)' % (7 - i))
        a('v_mfma_f32_16x16x32_bf16 v[84:87], v[%d:%d], v[%d:%d], %s' % (48 + 4 * i, 51 + 4 * i, 16 + 4 * i, 19 + 4 * i, '0' if i == 0 else 'v[84:87]'))
    stamp(4)
    a('v_lshlrev_b32 v90, 5, v1')
    a('v_and_b32 v91, 16, v0')
    a('s_lshl_b32 s52, s27, 9')
    a('v_add3_u32 v90, v90, v91, s52')
    a('s_mov_b64 exec, s[56:57]')
    a('ds_write_b128 v90, v[84:87] offset:%d' % APART)
    a('s_mov_b64 exec, -1')
    set_flag(FLAG_A, 91, 92)
    a('s_cmp_lg_u32 s27, 0')
    a('s_cbranch_scc1 L_A_poll')
    a('v_mov_b32 v89, 0')
    lds_wait(FLAG_A, 92, 89)
    a('v_lshlrev_b32 v90, 3, v0')
    for w in range(4):
        a('ds_read_b64 v[%d:%d], v90 offset:%d' % (92 + 2 * w, 93 + 2 * w, APART + 512 * w))
    a('s_waitcnt lgkmcnt(0)')
    a('v_add_f32 v92, v92, v94'); a('v_add_f32 v93, v93, v95')
    a('v_add_f32 v96, v96, v98'); a('v_add_f32 v97, v97, v99')
    a('v_add_f32 v92, v92, v96'); a('v_add_f32 v93, v93, v97')
    a('s_cmp_lt_u32 s29, 5')
    a('s_cbranch_scc1 L_A_pub')
    a('v_mov_b32 v96, v92'); a('v_mov_b32 v97, v93')
    a('v_permlane32_swap_b32 v92, v96')
    a('v_permlane32_swap_b32 v93, v97')
    a('v_add_f32 v92, v92, v96'); a('v_add_f32 v93, v93, v97')
    a('s_mov_b32 exec_lo, -1'); a('s_mov_b32 exec_hi, 0')
    a.label('L_A_pub')
    a('v_mov_b32 v94, 0')
    a('v_mov_b32 v95, v9')
    a('v_add_u32 v90, s60, v3')
    a('buffer_store_dwordx4 v[92:95], v90, s[32:35], 0 offen %s' % st_flags)
    a('s_mov_b64 exec, -1')
    stamp(5)
    a('s_branch L_A_poll')
    a.label('L_A_none')
    a('v_mov_b32 v89, 0')
    a('v_lshlrev_b32 v15, 2, v0')
    a('ds_write_b32 v15, v89')
    a('s_waitcnt lgkmcnt(0)')
    a('s_barrier')
    a('s_waitcnt vmcnt(0)')
    a('v_add_u32 v9, 0x%x, v9' % TAGC)
    a.label('L_A_poll')
    a('s_mul_i32 s52, s28, 5')
    a('s_lshl_b32 s52, s52, 10')
    a('s_lshl_b32 s53, s27, 8')
    a('s_add_u32 s52, s52, s53')
    a('s_add_u32 s52, s52, %d' % X1Q)
    a('v_lshlrev_b32 v90, 4, v1')
    a('v_add_u32 v91, s52, v90')
    a('v_lshlrev_b32 v90, 10, v2')
    a('v_add_u32 v90, v91, v90')
    a('v_add_u32 v91, 4096, v91')
    a('s_mov_b32 s58, %d' % SPIN_MEM)
    a.label('L_A_pl')
    a('buffer_load_dwordx4 v[92:95], v90, s[32:35], 0 offen %s' % ld_flags)
    a('buffer_load_dwordx4 v[96:99], v91, s[32:35], 0 offen %s' % ld_flags)
    a('s_waitcnt vmcnt(0)')
    a('v_cmp_ne_u32 vcc, v95, v9')
    a('v_cmp_ne_u32 s[52:53], v99, v9')
    a('s_or_b64 vcc, vcc, s[52:53]')
    a('s_cbranch_vccz L_A_pd')
    a('s_sub_u32 s58, s58, 1')
    a('s_cbranch_scc1 L_A_pd')
    if pollsleep: a('s_sleep %d' % pollsleep)
    a('s_branch L_A_pl')
    a.label('L_A_pd')
    stamp(6)
    a('v_permlane32_swap_b32 v92, v93')
    a('v_add_f32 v92, v92, v93')
    a('v_mov_b32 v93, v92')
    a('v_permlane16_swap_b32 v92, v93')
    a('v_add_f32 v92, v92, v93')
    a('v_cmp_gt_u32 vcc, 32, v0')
    a('v_cndmask_b32 v96, v97, v96, vcc')
    a('v_add_f32 v92, v92, v96')
    a('v_cvt_pk_bf16_f32 v92, v92, v92')
    a('v_lshrrev_b32 v93, 5, v0')
    a('v_lshl_add_u32 v93, v1, 1, v93')
    a('s_lshl_b32 s52, s27, 5')
    a('v_add_u32 v93, s52, v93')
    a('v_lshlrev_b32 v93, 1, v93')
    a('ds_write_b16 v93, v92 offset:%d' % QL)
    set_flag(FLAG_Q, 91, 94)
    stamp(7)
    write_stamps()
    a('s_endpgm')

    a.label('L_B')
    a('s_setprio %d' % prio[1])
    a('s_lshl_b32 s52, s28, 21')
    a('s_lshl_b32 s53, s29, 16')
    a('s_add_u32 s52, s52, s53')
    a('s_add_u32 s52, s52, %d' % (6144 * 256))
    a('s_add_u32 s44, s6, s52')
    a('s_addc_u32 s45, s7, 0')
    a('s_mov_b32 s46, 65536')
    a('s_mov_b32 s47, 0x20000')
    a('s_lshl_b32 s52, s27, 10')
    a('v_add_u32 v4, s52, v3')
    a('s_barrier')
    a('s_mov_b32 s52, s59')
    for i in range(16):
        a('buffer_load_dwordx4 v[%d:%d], v4, s[44:47], s52 offen %s' % (16 + 4 * i, 19 + 4 * i, ntK))
        if i < 15:
            a('s_add_u32 s52, s52, 4096')
            a('s_and_b32 s52, s52, 0xffff')
    stamp(1)
    a('v_mov_b32 v5, 0')
    lds_wait(FLAG_Q, 84, 5)
    stamp(2)
    a('v_lshlrev_b32 v6, 4, v1')
    a('ds_read_b128 v[80:83], v6 offset:%d' % QL)
    a('s_waitcnt lgkmcnt(0)')
    for i in range(16):
        a('s_waitcnt vmcnt(%d)' % (15 - i))
        k = 16 + 4 * i
        a('v_dot2_f32_bf16 v%d, v%d, v80, 0' % (84 + i, k))
        for r in range(1, 4):
            a('v_dot2_f32_bf16 v%d, v%d, v%d, v%d' % (84 + i, k + r, 80 + r, 84 + i))
    stamp(3)
    for i in range(8):
        a('v_add_f32_dpp v%d, v%d, v%d row_ror:8 row_mask:0xf bank_mask:0x3' % (84 + i, 84 + i, 84 + i))
        a('v_add_f32_dpp v%d, v%d, v%d row_ror:8 row_mask:0xf bank_mask:0xc' % (84 + i, 92 + i, 92 + i))
    for i in range(4):
        a('v_add_f32_dpp v%d, v%d, v%d row_half_mirror row_mask:0xf bank_mask:0x5' % (84 + i, 84 + i, 84 + i))
        a('v_add_f32_dpp v%d, v%d, v%d row_half_mirror row_mask:0xf bank_mask:0xa' % (84 + i, 88 + i, 88 + i))
    for i in range(4):
        a('v_add_f32_dpp v%d, v%d, v%d quad_perm:[2,3,0,1] row_mask:0xf bank_mask:0xf' % (88 + i, 84 + i, 84 + i))
    a('v_and_b32 v6, 2, v0')
    a('v_cmp_eq_u32 vcc, 0, v6')
    a('v_cndmask_b32 v84, v90, v88, vcc')
    a('v_cndmask_b32 v85, v91, v89, vcc')
    a('v_and_b32 v6, 1, v0')
    a('v_add_f32_dpp v88, v84, v84 quad_perm:[1,0,3,2] row_mask:0xf bank_mask:0xf')
    a('v_add_f32_dpp v89, v85, v85 quad_perm:[1,0,3,2] row_mask:0xf bank_mask:0xf')
    a('v_cmp_eq_u32 vcc, 0, v6')
    a('v_cndmask_b32 v84, v89, v88, vcc')
    a('v_cvt_pk_bf16_f32 v84, v84, v84')
    a('v_and_b32 v84, 0xffff0000, v84')
    a('v_mul_f32 v84, 0x%x, v84' % SCALE)
    a('v_cvt_pk_bf16_f32 v84, v84, v84')
    a('v_and_b32 v84, 0xffff0000, v84')
    a('v_mov_b32 v85, v84')
    allreduce('v_max_f32', 85, 86)
    a('v_sub_f32 v86, v84, v85')
    a('v_mul_f32 v86, 0x%x, v86' % LOG2E)
    a('v_exp_f32 v86, v86')
    a('v_cvt_pk_bf16_f32 v87, v86, v86')
    a('s_lshl_b32 s52, s27, 8')
    a('v_lshlrev_b32 v6, 2, v0')
    a('v_add_u32 v6, s52, v6')
    a('ds_write_b32 v6, v87 offset:%d' % PL)
    allreduce('v_add_f32', 86, 88)
    a('v_mov_b32 v88, v85')
    a('v_mov_b32 v89, v86')
    a('s_lshl_b32 s52, s27, 3')
    a('v_mov_b32 v6, s52')
    a('ds_write_b64 v6, v[88:89] offset:%d' % ML)
    set_flag(FLAG_P, 6, 7)
    stamp(4)
    write_stamps()
    a('s_endpgm')

    a.label('L_CD')
    a('s_setprio %d' % prio[2])
    a('buffer_load_dword v9, off, s[32:35], 0 sc1')
    srd(36, 's4', 's5', 1280)
    a('s_lshl_b32 s52, s2, 3')
    a('v_and_b32 v7, 1, v0')
    a('v_lshlrev_b32 v7, 2, v7')
    a('v_add_u32 v10, s52, v7')
    a('buffer_load_dword v8, v10, s[36:39], 0 offen')
    a('s_lshl_b32 s52, s28, 21')
    a('s_lshl_b32 s53, s29, 16')
    a('s_add_u32 s52, s52, s53')
    a('s_add_u32 s52, s52, %d' % (6144 * 256))
    a('s_add_u32 s44, s8, s52')
    a('s_addc_u32 s45, s9, 0')
    a('s_mov_b32 s46, 65536')
    a('s_mov_b32 s47, 0x20000')
    a('s_lshl_b32 s52, s27, 10')
    a('v_add_u32 v4, s52, v3')
    a('s_cmp_lt_u32 s29, 5')
    a('s_cbranch_scc0 L_C_ffn')
    a('s_mul_i32 s52, s28, %d' % (128 * 1280))
    a('s_lshl_b32 s53, s29, 8')
    a('s_add_u32 s52, s52, s53')
    a('s_add_u32 s40, s12, s52')
    a('s_addc_u32 s41, s13, 0')
    a('s_sub_u32 s42, 5242880, s52')
    a('s_mov_b32 s43, 0x20000')
    a('s_mul_i32 s52, s27, %d' % (32 * 1280))
    a('v_mul_u32_u24 v5, %d, v2' % (8 * 1280))
    a('v_lshlrev_b32 v6, 4, v1')
    a('v_add3_u32 v5, v5, v6, s52')
    a('v_add_u32 v6, 5120, v5')
    a('s_branch L_C_go')
    a.label('L_C_ffn')
    a('s_min_u32 s54, s28, 26')
    a('s_mul_i32 s52, s54, %d' % (64 * 1280))
    a('s_lshl_b32 s53, s30, 9')
    a('s_add_u32 s52, s52, s53')
    a('s_add_u32 s40, s18, s52')
    a('s_addc_u32 s41, s19, 0')
    a('s_sub_u32 s42, 2211840, s52')
    a('s_mov_b32 s43, 0x20000')
    a('s_mul_i32 s52, s27, %d' % (16 * 1280))
    a('v_mul_u32_u24 v5, %d, v2' % (4 * 1280))
    a('v_lshlrev_b32 v6, 4, v1')
    a('v_add3_u32 v5, v5, v6, s52')
    a('v_add_u32 v6, 256, v5')
    a('s_cmp_eq_u32 s30, 2')
    a('s_cbranch_scc0 L_C_f1')
    a('v_mov_b32 v6, 0x7ff00000')
    a.label('L_C_f1')
    a('s_cmp_ge_u32 s28, 27')
    a('s_cbranch_scc0 L_C_go')
    a('v_mov_b32 v5, 0x7ff00000')
    a('v_mov_b32 v6, 0x7ff00000')
    a.label('L_C_go')
    a('s_barrier')
    a('s_mov_b32 s52, s59')
    for i in range(16):
        a('buffer_load_dwordx4 v[%d:%d], v4, s[44:47], s52 offen %s' % (16 + 4 * i, 19 + 4 * i, ntV))
        if i < 15:
            a('s_add_u32 s52, s52, 4096')
            a('s_and_b32 s52, s52, 0xffff')
    for i in range(8):
        a('buffer_load_dwordx4 v[%d:%d], v%d, s[40:43], 0 offen offset:%d %s' % (80 + 4 * i, 83 + 4 * i, 5 if i < 4 else 6, (i % 4) * 1280, ntD))
    stamp(1)
    masks(128, 148)
    a('v_mov_b32 v11, 0')
    lds_wait(FLAG_P, 148, 11)
    stamp(2)
    a('s_lshl_b32 s52, s27, 8')
    a('v_lshlrev_b32 v12, 6, v2')
    a('v_add_u32 v12, s52, v12')
    for k in range(4):
        a('ds_read_b128 v[%d:%d], v12 offset:%d' % (112 + 4 * k, 115 + 4 * k, PL + 16 * k))
    a('ds_read_b128 v[148:151], v11 offset:%d' % ML)
    a('ds_read_b128 v[152:155], v11 offset:%d' % (ML + 16))
    a('s_waitcnt lgkmcnt(0)')
    a('v_max_f32 v156, v148, v150'); a('v_max_f32 v157, v152, v154'); a('v_max_f32 v156, v156, v157')
    for k in range(4):
        a('v_sub_f32 v%d, v%d, v156' % (148 + 2 * k, 148 + 2 * k))
    for k in range(4):
        a('v_mul_f32 v%d, 0x%x, v%d' % (148 + 2 * k, LOG2E, 148 + 2 * k))
    for k in range(4):
        a('v_exp_f32 v%d, v%d' % (148 + 2 * k, 148 + 2 * k))
    a('v_mul_f32 v157, v148, v149')
    a('v_fmac_f32 v157, v150, v151'); a('v_fmac_f32 v157, v152, v153'); a('v_fmac_f32 v157, v154, v155')
    a('v_mov_b32 v158, v148')
    for k in range(1, 4):
        a('s_cmp_eq_u32 s27, %d' % k)
        a('s_cselect_b64 vcc, -1, 0')
        a('v_cndmask_b32 v158, v158, v%d, vcc' % (148 + 2 * k))
    def aop(i):
        b = 132 + 4 * (i & 1)
        for r in range(4):
            a('v_and_b32 v%d, v%d, v%d' % (b + r, 112 + i, 128 + r))
    aop(0)
    for i in range(16):
        if i < 15: aop(i + 1)
        a('s_waitcnt vmcnt(%d)' % (8 + 15 - i))
        b = 132 + 4 * (i & 1)
        a('v_mfma_f32_16x16x32_bf16 v[140:143], v[%d:%d], v[%d:%d], %s' % (b, b + 3, 16 + 4 * i, 19 + 4 * i, '0' if i == 0 else 'v[140:143]'))
    stamp(3)
    a('v_add_u32 v9, 0x%x, v9' % TAGC)
    a('v_lshlrev_b32 v12, 5, v1')
    a('v_and_b32 v13, 16, v0')
    a('s_lshl_b32 s52, s27, 9')
    a('v_add3_u32 v12, v12, v13, s52')
    for r in range(4):
        a('v_mul_f32 v%d, v%d, v158' % (140 + r, 140 + r))
    a('s_mov_b32 exec_lo, -1'); a('s_mov_b32 exec_hi, 0')
    a('ds_write_b128 v12, v[140:143] offset:%d' % PVP)
    a('s_mov_b64 exec, -1')
    a('s_waitcnt lgkmcnt(0)')
    a('s_barrier')
    a('s_cmp_lg_u32 s27, 0')
    a('s_cbranch_scc1 L_C_x2done')
    a('v_and_b32 v12, 31, v0')
    a('v_lshlrev_b32 v12, 4, v12')
    for w in range(4):
        a('ds_read_b128 v[%d:%d], v12 offset:%d' % (16 + 4 * w, 19 + 4 * w, PVP + 512 * w))
    a('s_lshl_b32 s52, s28, 3')
    a('s_add_u32 s52, s52, s29')
    a('s_lshl_b32 s52, s52, 10')
    a('s_add_u32 s52, s52, %d' % X2)
    a('v_add_u32 v13, s52, v3')
    a('v_cmp_gt_u32 vcc, 32, v0')
    a('s_waitcnt lgkmcnt(0)')
    for r in range(4):
        a('v_add_f32 v%d, v%d, v%d' % (16 + r, 16 + r, 20 + r))
        a('v_add_f32 v%d, v%d, v%d' % (24 + r, 24 + r, 28 + r))
    for r in range(4):
        a('v_add_f32 v%d, v%d, v%d' % (16 + r, 16 + r, 24 + r))
    a('v_cndmask_b32 v20, v19, v16, vcc')
    a('v_cndmask_b32 v21, v156, v17, vcc')
    a('v_cndmask_b32 v22, v157, v18, vcc')
    a('v_mov_b32 v23, v9')
    a('buffer_store_dwordx4 v[20:23], v13, s[32:35], 0 offen %s' % st_flags)
    a.label('L_C_x2done')
    stamp(4)
    a('s_cmp_lt_u32 s29, 5')
    a('s_cbranch_scc0 L_D_ffn')
    a('v_and_b32 v12, 7, v0')
    a('v_lshlrev_b32 v12, 10, v12')
    a('v_lshrrev_b32 v13, 3, v0')
    a('v_lshlrev_b32 v13, 4, v13')
    a('s_lshl_b32 s52, s28, 13')
    a('s_lshl_b32 s53, s27, 7')
    a('s_add_u32 s52, s52, s53')
    a('s_add_u32 s52, s52, %d' % X2)
    a('v_add3_u32 v12, v12, v13, s52')
    a('s_mov_b32 s58, %d' % SPIN_MEM)
    a.label('L_D_pl')
    a('buffer_load_dwordx4 v[16:19], v12, s[32:35], 0 offen %s' % ld_flags)
    a('buffer_load_dwordx4 v[20:23], v12, s[32:35], 0 offen offset:512 %s' % ld_flags)
    a('s_waitcnt vmcnt(0)')
    a('v_cmp_ne_u32 vcc, v19, v9')
    a('v_cmp_ne_u32 s[52:53], v23, v9')
    a('s_or_b64 vcc, vcc, s[52:53]')
    a('s_cbranch_vccz L_D_pd')
    a('s_sub_u32 s58, s58, 1')
    a('s_cbranch_scc1 L_D_pd')
    if pollsleep: a('s_sleep %d' % pollsleep)
    a('s_branch L_D_pl')
    a.label('L_D_pd')
    stamp(5)
    def red8(op, v):
        return ['%s_dpp v%d, v%d, v%d row_half_mirror row_mask:0xf bank_mask:0xf' % (op, v, v, v),
                '%s_dpp v%d, v%d, v%d quad_perm:[1,0,3,2] row_mask:0xf bank_mask:0xf' % (op, v, v, v),
                '%s_dpp v%d, v%d, v%d quad_perm:[2,3,0,1] row_mask:0xf bank_mask:0xf' % (op, v, v, v)]
    a('v_mov_b32 v24, v21')
    for s_ in red8('v_max_f32', 24): a(s_)
    a('v_sub_f32 v21, v21, v24')
    a('v_mul_f32 v21, 0x%x, v21' % LOG2E)
    a('v_exp_f32 v21, v21')
    vals = (22, 16, 17, 18, 20)
    for v in vals: a('v_mul_f32 v%d, v%d, v21' % (v, v))
    for st in range(3):
        for v in vals: a(red8('v_add_f32', v)[st])
    a('v_rcp_f32 v22, v22')
    for v in vals[1:]: a('v_mul_f32 v%d, v%d, v22' % (v, v))
    for v in vals[1:]: a('v_cvt_pk_bf16_f32 v%d, v%d, v%d' % (v, v, v))
    ov = (16, 17, 18, 20)
    for i in range(8):
        for r in range(4):
            if i < 4: a('v_and_b32 v%d, v%d, v%d' % (24 + 4 * i + r, ov[i], 128 + r))
            else: a('v_and_b32_dpp v%d, v%d, v%d row_ror:8 row_mask:0xf bank_mask:0xf' % (24 + 4 * i + r, ov[i - 4], 128 + r))
    for i in range(8):
        a('v_mfma_f32_16x16x32_bf16 v[140:143], v[%d:%d], v[%d:%d], %s' % (24 + 4 * i, 27 + 4 * i, 80 + 4 * i, 83 + 4 * i, '0' if i == 0 else 'v[140:143]'))
    a('s_lshl_b32 s60, s29, 5')
    a('s_add_u32 s60, s60, s28')
    a('s_lshl_b32 s60, s60, 10')
    a('s_add_u32 s60, s60, %d' % X3A)
    a('s_mov_b32 s61, 1')
    a('s_branch L_D_red')
    a.label('L_D_ffn')
    a('s_cmp_ge_u32 s28, 27')
    a('s_cbranch_scc1 L_final')
    a('v_and_b32 v12, 3, v0')
    a('v_min_u32 v13, 2, v12')
    a('v_lshlrev_b32 v13, 10, v13')
    a('v_lshlrev_b32 v14, 5, v2')
    a('s_mul_i32 s52, s28, 3072')
    a('s_lshl_b32 s53, s27, 7')
    a('s_add_u32 s52, s52, s53')
    a('s_add_u32 s52, s52, %d' % X1H)
    a('v_add3_u32 v13, v13, v14, s52')
    a('s_mov_b32 s58, %d' % SPIN_MEM)
    a.label('L_F_pl')
    a('buffer_load_dwordx4 v[16:19], v13, s[32:35], 0 offen %s' % ld_flags)
    a('buffer_load_dwordx4 v[20:23], v13, s[32:35], 0 offen offset:16 %s' % ld_flags)
    a('s_waitcnt vmcnt(0)')
    a('v_cmp_ne_u32 vcc, v19, v9')
    a('v_cmp_ne_u32 s[52:53], v23, v9')
    a('s_or_b64 vcc, vcc, s[52:53]')
    a('s_cbranch_vccz L_F_pd')
    a('s_sub_u32 s58, s58, 1')
    a('s_cbranch_scc1 L_F_pd')
    if pollsleep: a('s_sleep %d' % pollsleep)
    a('s_branch L_F_pl')
    a.label('L_F_pd')
    stamp(5)
    a('v_cmp_gt_u32 vcc, 3, v12')
    hv = (16, 17, 20, 21)
    for v in hv: a('v_cndmask_b32 v%d, 0, v%d, vcc' % (v, v))
    for v in hv: a('v_add_f32_dpp v%d, v%d, v%d quad_perm:[1,0,3,2] row_mask:0xf bank_mask:0xf' % (v, v, v))
    for v in hv: a('v_add_f32_dpp v%d, v%d, v%d quad_perm:[2,3,0,1] row_mask:0xf bank_mask:0xf' % (v, v, v))
    for v in hv: a('v_cvt_pk_bf16_f32 v%d, v%d, v%d' % (v, v, v))
    for v in hv: a('v_and_b32 v%d, 0xffff0000, v%d' % (v, v))
    for k, v in enumerate(hv): a('v_mul_f32 v%d, 0x%x, v%d' % (24 + k, LOG2E ^ 0x80000000, v))
    for k in range(4): a('v_exp_f32 v%d, v%d' % (24 + k, 24 + k))
    for k in range(4): a('v_add_f32 v%d, 1.0, v%d' % (24 + k, 24 + k))
    for k in range(4): a('v_rcp_f32 v%d, v%d' % (24 + k, 24 + k))
    for k, v in enumerate(hv): a('v_mul_f32 v%d, v%d, v%d' % (v, v, 24 + k))
    for v in hv: a('v_cvt_pk_bf16_f32 v%d, v%d, v%d' % (v, v, v))
    for i in range(4):
        for r in range(4):
            a('v_and_b32 v%d, v%d, v%d' % (24 + 4 * i + r, hv[i], 128 + r))
    for i in range(4):
        a('v_mfma_f32_16x16x32_bf16 v[140:143], v[%d:%d], v[%d:%d], %s' % (24 + 4 * i, 27 + 4 * i, 80 + 4 * i, 83 + 4 * i, '0' if i == 0 else 'v[140:143]'))
        a('v_mfma_f32_16x16x32_bf16 v[144:147], v[%d:%d], v[%d:%d], %s' % (24 + 4 * i, 27 + 4 * i, 96 + 4 * i, 99 + 4 * i, '0' if i == 0 else 'v[144:147]'))
    a('s_lshl_b32 s60, s30, 6')
    a('s_add_u32 s60, s60, s28')
    a('s_lshl_b32 s60, s60, 10')
    a('s_add_u32 s60, s60, %d' % X3F)
    a('s_cmp_eq_u32 s30, 2')
    a('s_cselect_b32 s61, 1, 2')
    a.label('L_D_red')
    a('v_lshlrev_b32 v12, 5, v1')
    a('v_and_b32 v13, 16, v0')
    a('s_lshl_b32 s52, s27, 10')
    a('v_add3_u32 v12, v12, v13, s52')
    a('s_nop 7')
    a('s_mov_b32 exec_lo, -1'); a('s_mov_b32 exec_hi, 0')
    a('ds_write_b128 v12, v[140:143] offset:%d' % FIN)
    a('s_cmp_eq_u32 s61, 2')
    a('s_cbranch_scc0 L_D_w1')
    a('ds_write_b128 v12, v[144:147] offset:%d' % (FIN + 512))
    a.label('L_D_w1')
    a('s_mov_b64 exec, -1')
    a('s_waitcnt lgkmcnt(0)')
    a('s_barrier')
    stamp(6)
    a('s_and_b32 s52, s27, 1')
    a('s_cmp_lg_u32 s52, 0')
    a('s_cbranch_scc1 L_final')
    a('s_lshr_b32 s52, s27, 1')
    a('s_cmp_ge_u32 s52, s61')
    a('s_cbranch_scc1 L_final')
    a('s_lshl_b32 s53, s52, 9')
    a('v_lshlrev_b32 v12, 3, v0')
    a('v_add_u32 v12, s53, v12')
    for w in range(4):
        a('ds_read_b64 v[%d:%d], v12 offset:%d' % (16 + 2 * w, 17 + 2 * w, FIN + 1024 * w))
    a('s_lshl_b32 s53, s52, 15')
    a('s_add_u32 s53, s53, s60')
    a('v_add_u32 v13, s53, v3')
    a('s_waitcnt lgkmcnt(0)')
    a('v_add_f32 v16, v16, v18'); a('v_add_f32 v17, v17, v19')
    a('v_add_f32 v20, v20, v22'); a('v_add_f32 v21, v21, v23')
    a('v_add_f32 v16, v16, v20'); a('v_add_f32 v17, v17, v21')
    a('v_mov_b32 v18, 0')
    a('v_mov_b32 v19, v9')
    a('buffer_store_dwordx4 v[16:19], v13, s[32:35], 0 offen %s' % st_flags)
    stamp(7)
    a.label('L_final')
    a('s_cmp_eq_u32 s27, 1')
    a('s_cbranch_scc0 L_CD_end')
    a('s_cmp_lt_u32 s2, 160')
    a('s_cbranch_scc0 L_CD_end')
    a('s_lshr_b32 s52, s2, 5')
    a('s_and_b32 s53, s2, 31')
    a('s_lshl_b32 s52, s52, 15')
    a('s_lshl_b32 s53, s53, 5')
    a('s_add_u32 s52, s52, s53')
    a('v_lshrrev_b32 v12, 1, v0')
    a('v_and_b32 v13, 1, v0')
    a('v_lshlrev_b32 v13, 4, v13')
    a('v_add_u32 v13, s52, v13')
    a('v_min_u32 v14, 26, v12')
    a('v_lshlrev_b32 v14, 10, v14')
    a('v_lshlrev_b32 v15, 10, v12')
    a('v_add_u32 v14, v14, v13')
    a('v_add_u32 v15, v15, v13')
    a('v_add_u32 v14, 0x%x, v14' % X3F)
    a('v_add_u32 v15, 0x%x, v15' % X3A)
    a('s_mov_b32 s58, %d' % SPIN_MEM)
    a.label('L_R_pl')
    a('buffer_load_dwordx4 v[16:19], v15, s[32:35], 0 offen %s' % ld_flags)
    a('buffer_load_dwordx4 v[20:23], v14, s[32:35], 0 offen %s' % ld_flags)
    a('s_waitcnt vmcnt(0)')
    a('v_cmp_ne_u32 vcc, v19, v9')
    a('v_cmp_ne_u32 s[52:53], v23, v9')
    a('s_or_b64 vcc, vcc, s[52:53]')
    a('s_cbranch_vccz L_R_pd')
    a('s_sub_u32 s58, s58, 1')
    a('s_cbranch_scc1 L_R_pd')
    if pollsleep: a('s_sleep %d' % pollsleep)
    a('s_branch L_R_pl')
    a.label('L_R_pd')
    stamp(8)
    a('v_cmp_gt_u32 vcc, 27, v12')
    a('v_cndmask_b32 v20, 0, v20, vcc')
    a('v_cndmask_b32 v21, 0, v21, vcc')
    fv = (16, 17, 20, 21)
    for r in (2, 4, 8):
        for v in fv: a('v_add_f32_dpp v%d, v%d, v%d row_ror:%d row_mask:0xf bank_mask:0xf' % (v, v, v, r))
    for k, v in enumerate(fv): a('v_mov_b32 v%d, v%d' % (24 + k, v))
    for k, v in enumerate(fv): a('v_permlane16_swap_b32 v%d, v%d' % (v, 24 + k))
    for k, v in enumerate(fv): a('v_add_f32 v%d, v%d, v%d' % (v, v, 24 + k))
    for k, v in enumerate(fv): a('v_mov_b32 v%d, v%d' % (24 + k, v))
    for k, v in enumerate(fv): a('v_permlane32_swap_b32 v%d, v%d' % (v, 24 + k))
    for k, v in enumerate(fv): a('v_add_f32 v%d, v%d, v%d' % (v, v, 24 + k))
    a('v_cvt_pk_bf16_f32 v16, v16, v17')
    a('v_cvt_pk_bf16_f32 v20, v20, v21')
    a('v_lshlrev_b32 v24, 16, v8'); a('v_and_b32 v25, 0xffff0000, v8')
    a('v_lshlrev_b32 v26, 16, v16'); a('v_and_b32 v27, 0xffff0000, v16')
    a('v_add_f32 v24, v24, v26'); a('v_add_f32 v25, v25, v27')
    a('v_cvt_pk_bf16_f32 v24, v24, v25')
    a('v_lshlrev_b32 v26, 16, v20'); a('v_and_b32 v27, 0xffff0000, v20')
    a('v_lshlrev_b32 v28, 16, v24'); a('v_and_b32 v29, 0xffff0000, v24')
    a('v_add_f32 v26, v26, v28'); a('v_add_f32 v27, v27, v29')
    a('v_cvt_pk_bf16_f32 v26, v26, v27')
    srd(48, 's20', 's21', 1280)
    a('s_mov_b64 exec, 3')
    a('buffer_store_dword v26, v10, s[48:51], 0 offen')
    a('s_cmp_eq_u32 s2, 0')
    a('s_cbranch_scc0 L_CD_end')
    a('s_mov_b64 exec, 1')
    a('buffer_store_dword v9, off, s[32:35], 0 sc1')
    a.label('L_CD_end')
    stamp(9)
    write_stamps()
    a.label('L_end')
    a('s_endpgm')
    lines = hazard.fix(a.lines)
    return wrap('\n'.join(lines) + '\n', 256, 768, LDS_BYTES, 160, sgpr=100)

if __name__ == '__main__':
    out = sys.argv[1] if len(sys.argv) > 1 else 'k.s'
    kw = {}
    for arg in sys.argv[2:]:
        k, v = arg.split('=')
        kw[k] = eval(v)
    open(out, 'w').write(gen(**kw))
```

```python
import sys
from asmlib import *
import hazard

FLAG_A, FLAG_Q, FLAG_P = 0, 16, 32
QL, ML, PL, APART, PVP, FIN = 64, 320, 512, 2048, 4096, 6144
LDS_BYTES = 10240
X1Q, X1H, X2, X3A, X3F, STAMP = 0x1000, 0x30000, 0x50000, 0x90000, 0xC0000, 0x100000
WS_RECORDS = 0x200000
TAGC = 0x9E3779B1
LOG2E = 0x3FB8AA3B
SCALE = 0x3DB504F3
INV640 = 0x3ACCCCCD
EPS = 0x3727C5AC
SPIN_LDS = 1 << 20
SPIN_MEM = 1 << 16

def gen(stamps=False, ntA='nt', ntK='nt', ntV='nt', ntD='nt', prio=(3, 2, 0), rot=True, st_flags='sc1', ld_flags='sc1', pollsleep=0, dbgtime=False):
    a = Asm()
    stamp_idx = [0]
    if dbgtime: stamps = True
    def stamp(k):
        if stamps: a('s_memrealtime s[%d:%d]' % (64 + 2 * k, 65 + 2 * k))
    def srd(r, lo, hi, rec):
        a('s_mov_b32 s%d, %s' % (r, lo)); a('s_mov_b32 s%d, %s' % (r + 1, hi))
        a('s_mov_b32 s%d, %s' % (r + 2, rec)); a('s_mov_b32 s%d, 0x20000' % (r + 3))
    def write_dbg(role):
        slots = {0: {2: 2, 4: 3, 6: 4, 7: 1}, 1: {1: 5, 3: 6, 4: 7}, 2: {1: 8, 2: 9, 3: 10, 5: 11, 6: 12, 8: 13, 9: 14}}[role]
        a('s_waitcnt lgkmcnt(0)')
        a('s_mov_b64 exec, -1')
        a('v_mov_b32 v1, 0')
        a('s_not_b32 s52, s64')
        a('v_writelane_b32 v1, s52, 0')
        a('v_writelane_b32 v1, s64, 15')
        for k, sl in slots.items():
            a('v_writelane_b32 v1, s%d, %d' % (64 + 2 * k, sl))
        srd(48, 's22', 's23', 256)
        a('v_lshlrev_b32 v2, 2, v0')
        a('s_mov_b64 exec, 0xffff')
        a('buffer_atomic_umax v1, v2, s[48:51], 0 offen')
        a('s_waitcnt vmcnt(0)')
    def write_stamps(role=0):
        if not stamps: return
        if dbgtime: return write_dbg(role)
        a('s_waitcnt lgkmcnt(0)')
        a('s_mov_b64 exec, -1')
        a('v_mov_b32 v1, 0')
        for k in range(16):
            a('v_writelane_b32 v1, s%d, %d' % (64 + 2 * k, k))
        a('s_lshl_b32 s52, s2, 4')
        a('s_lshl_b32 s53, s26, 2')
        a('s_add_u32 s52, s52, s53')
        a('s_add_u32 s52, s52, s27')
        a('s_lshl_b32 s52, s52, 6')
        a('s_add_u32 s52, s52, %d' % STAMP)
        a('v_lshlrev_b32 v2, 2, v0')
        a('v_add_u32 v2, s52, v2')
        a('s_mov_b64 exec, 0xffff')
        a('buffer_store_dword v1, v2, s[32:35], 0 offen')
        a('s_waitcnt vmcnt(0)')
    def lds_wait(off, tmp, zero):
        L = a.newlabel('L_lw'); D = a.newlabel('L_lwd')
        a('s_mov_b32 s58, %d' % SPIN_LDS)
        a.label(L)
        a('ds_read_b128 v[%d:%d], v%d offset:%d' % (tmp, tmp + 3, zero, off))
        a('s_waitcnt lgkmcnt(0)')
        a('v_and_b32 v%d, v%d, v%d' % (tmp, tmp, tmp + 1))
        a('v_and_b32 v%d, v%d, v%d' % (tmp + 2, tmp + 2, tmp + 3))
        a('v_and_b32 v%d, v%d, v%d' % (tmp, tmp, tmp + 2))
        a('v_cmp_ne_u32 vcc, 0, v%d' % tmp)
        a('s_cbranch_vccnz %s' % D)
        a('s_sub_u32 s58, s58, 1')
        a('s_cbranch_scc1 %s' % D)
        a('s_sleep 1')
        a('s_branch %s' % L)
        a.label(D)
    def set_flag(off, zero, one):
        a('s_lshl_b32 s52, s27, 2')
        a('v_mov_b32 v%d, s52' % zero)
        a('v_mov_b32 v%d, 1' % one)
        a('ds_write_b32 v%d, v%d offset:%d' % (zero, one, off))
    def allreduce(op, v, t):
        for r in (8, 4, 2, 1):
            a('%s_dpp v%d, v%d, v%d row_ror:%d row_mask:0xf bank_mask:0xf' % (op, v, v, v, r))
        a('v_mov_b32 v%d, v%d' % (t, v))
        a('v_permlane16_swap_b32 v%d, v%d' % (v, t))
        a('%s v%d, v%d, v%d' % (op, v, v, t))
        a('v_mov_b32 v%d, v%d' % (t, v))
        a('v_permlane32_swap_b32 v%d, v%d' % (v, t))
        a('%s v%d, v%d, v%d' % (op, v, v, t))
    def masks(m, tmp, half_only_sreg=None, half_only=True):
        a('v_and_b32 v%d, 1, v0' % tmp)
        a('v_mov_b32 v%d, 0xffff' % (tmp + 1))
        a('v_lshlrev_b32 v%d, 4, v%d' % (tmp, tmp))
        a('v_lshlrev_b32 v%d, v%d, v%d' % (tmp + 1, tmp, tmp + 1))
        if half_only_sreg is not None:
            a('v_and_b32 v%d, %s, v0' % (tmp, half_only_sreg))
            a('v_cmp_eq_u32 vcc, 0, v%d' % tmp)
            a('v_cndmask_b32 v%d, 0, v%d, vcc' % (tmp + 1, tmp + 1))
        elif half_only:
            a('v_and_b32 v%d, 8, v0' % tmp)
            a('v_cmp_eq_u32 vcc, 0, v%d' % tmp)
            a('v_cndmask_b32 v%d, 0, v%d, vcc' % (tmp + 1, tmp + 1))
        a('v_bfe_u32 v%d, v0, 1, 2' % tmp)
        for r in range(4):
            a('v_cmp_eq_u32 vcc, %d, v%d' % (r, tmp))
            a('v_cndmask_b32 v%d, 0, v%d, vcc' % (m + r, tmp + 1))

    a('s_cmp_ge_u32 s2, 256')
    a('s_cbranch_scc1 L_end')
    if stamps:
        for k in range(1, 16): a('s_mov_b32 s%d, 0' % (64 + 2 * k))
    stamp(0)
    a('s_load_dwordx16 s[4:19], s[0:1], 0')
    a('s_load_dwordx4 s[20:23], s[0:1], 64')
    a('s_load_dwordx2 s[24:25], s[0:1], 80')
    a('v_lshrrev_b32 v1, 6, v0')
    a('v_and_b32 v0, 63, v0')
    a('v_readfirstlane_b32 s26, v1')
    a('s_and_b32 s28, s2, 7')
    a('s_lshl_b32 s28, s28, 2')
    a('s_lshr_b32 s29, s2, 6')
    a('s_add_u32 s28, s28, s29')
    a('s_lshr_b32 s29, s2, 3')
    a('s_and_b32 s59, s29, 15')
    if not rot: a('s_mov_b32 s59, 0')
    a('s_lshl_b32 s59, s59, 12')
    a('s_and_b32 s29, s29, 7')
    a('s_sub_u32 s30, s29, 5')
    a('s_and_b32 s27, s26, 3')
    a('s_lshr_b32 s26, s26, 2')
    a('v_and_b32 v1, 15, v0')
    a('v_lshrrev_b32 v2, 4, v0')
    a('v_lshlrev_b32 v3, 4, v0')
    a('s_waitcnt lgkmcnt(0)')
    srd(32, 's24', 's25', WS_RECORDS)
    a('s_cmp_eq_u32 s26, 1')
    a('s_cbranch_scc1 L_B')
    a('s_cmp_eq_u32 s26, 2')
    a('s_cbranch_scc1 L_CD')

    a('s_setprio %d' % prio[0])
    a('buffer_load_dword v9, off, s[32:35], 0 sc1')
    srd(36, 's4', 's5', 1280)
    a('s_cmp_lt_u32 s29, 5')
    a('s_cbranch_scc0 L_A_ffn')
    a('s_lshl_b32 s52, s28, 8')
    a('s_add_u32 s40, s10, s52')
    a('s_addc_u32 s41, s11, 0')
    a('s_sub_u32 s42, 5242880, s52')
    a('s_mov_b32 s43, 0x20000')
    a('s_mov_b32 s53, 8192')
    a('s_mov_b32 s54, 4')
    a('s_lshl_b32 s55, s29, 7')
    a('s_lshl_b32 s52, s27, 5')
    a('s_add_u32 s55, s55, s52')
    a('s_mov_b32 s56, -1')
    a('s_mov_b32 s57, 0')
    a('s_mov_b32 s31, 8')
    a('s_mul_i32 s60, s28, 5')
    a('s_add_u32 s60, s60, s29')
    a('s_lshl_b32 s60, s60, 10')
    a('s_add_u32 s60, s60, %d' % X1Q)
    a('s_branch L_A_go')
    a.label('L_A_ffn')
    a('s_cmp_ge_u32 s28, 27')
    a('s_cbranch_scc1 L_A_none')
    a('s_lshl_b32 s52, s28, 7')
    a('s_add_u32 s40, s16, s52')
    a('s_addc_u32 s41, s17, 0')
    a('s_sub_u32 s42, 2211840, s52')
    a('s_mov_b32 s43, 0x20000')
    a('s_mov_b32 s53, 3456')
    a('s_mov_b32 s54, 3')
    a('s_lshl_b32 s55, s30, 8')
    a('s_lshl_b32 s52, s27, 6')
    a('s_add_u32 s55, s55, s52')
    a('s_mov_b32 s56, 0x00ff00ff')
    a('s_mov_b32 s57, 0xff00ff00')
    a('s_mov_b32 s31, 0')
    a('s_mul_i32 s60, s28, 3')
    a('s_add_u32 s60, s60, s30')
    a('s_lshl_b32 s60, s60, 10')
    a('s_add_u32 s60, s60, %d' % X1H)
    a.label('L_A_go')
    a('v_lshrrev_b32 v14, s54, v0')
    a('s_lshl_b32 s52, 1, s54')
    a('s_sub_u32 s52, s52, 1')
    a('v_and_b32 v15, s52, v0')
    a('v_lshlrev_b32 v14, 3, v14')
    a('v_add_u32 v14, s55, v14')
    a('v_mul_lo_u32 v88, v14, s53')
    a('v_lshlrev_b32 v15, 4, v15')
    a('v_add_u32 v88, v88, v15')
    a('v_lshlrev_b32 v14, 1, v14')
    a('v_lshlrev_b32 v15, 2, v0')
    a('buffer_load_dwordx4 v[4:7], v3, s[36:39], 0 offen')
    a('buffer_load_dword v8, v15, s[36:39], 0 offen offset:1024')
    a('buffer_load_dwordx4 v[10:13], v14, s[36:39], 0 offen')
    a('s_mov_b32 s52, 0')
    for i in range(8):
        a('buffer_load_dwordx4 v[%d:%d], v88, s[40:43], s52 offen %s' % (16 + 4 * i, 19 + 4 * i, ntA))
        if i < 7: a('s_add_u32 s52, s52, s53')
    stamp(1)
    a('v_mov_b32 v89, 0')
    a('ds_write_b32 v15, v89')
    a('s_waitcnt lgkmcnt(0)')
    a('s_barrier')
    masks(80, 90, half_only_sreg='s31')
    a('s_waitcnt vmcnt(8)')
    stamp(2)
    a('v_add_u32 v9, 0x%x, v9' % TAGC)
    for k in range(4):
        a('v_lshlrev_b32 v%d, 16, v%d' % (90 + 2 * k, 4 + k))
        a('v_and_b32 v%d, 0xffff0000, v%d' % (91 + 2 * k, 4 + k))
    a('v_lshlrev_b32 v98, 16, v8')
    a('v_and_b32 v99, 0xffff0000, v8')
    a('v_add_f32 v100, v90, v91'); a('v_add_f32 v101, v92, v93'); a('v_add_f32 v102, v94, v95'); a('v_add_f32 v103, v96, v97'); a('v_add_f32 v104, v98, v99')
    a('v_add_f32 v100, v100, v101'); a('v_add_f32 v102, v102, v103'); a('v_add_f32 v100, v100, v104'); a('v_add_f32 v100, v100, v102')
    allreduce('v_add_f32', 100, 101)
    a('v_mul_f32 v100, 0x%x, v100' % INV640)
    for k in range(10):
        a('v_sub_f32 v%d, v%d, v100' % (90 + k, 90 + k))
    a('v_mul_f32 v101, v90, v90')
    a('v_mul_f32 v102, v91, v91')
    for k in range(2, 10, 2):
        a('v_fmac_f32 v101, v%d, v%d' % (90 + k, 90 + k))
        a('v_fmac_f32 v102, v%d, v%d' % (91 + k, 91 + k))
    a('v_add_f32 v101, v101, v102')
    allreduce('v_add_f32', 101, 102)
    a('v_mul_f32 v101, 0x%x, v101' % INV640)
    a('v_cvt_pk_bf16_f32 v102, v100, v101')
    a('v_lshlrev_b32 v100, 16, v102')
    a('v_and_b32 v101, 0xffff0000, v102')
    a('v_add_f32 v101, 0x%x, v101' % EPS)
    a('v_cvt_pk_bf16_f32 v101, v101, v101')
    a('v_and_b32 v101, 0xffff0000, v101')
    a('v_sqrt_f32 v101, v101')
    a('v_cvt_pk_bf16_f32 v101, v101, v101')
    a('v_and_b32 v101, 0xffff0000, v101')
    a('v_rcp_f32 v101, v101')
    for k in range(4):
        a('v_lshlrev_b32 v%d, 16, v%d' % (90 + 2 * k, 10 + k))
        a('v_and_b32 v%d, 0xffff0000, v%d' % (91 + 2 * k, 10 + k))
    for k in range(8): a('v_sub_f32 v%d, v%d, v100' % (90 + k, 90 + k))
    for k in range(8): a('v_cvt_pk_bf16_f32 v%d, v%d, v%d' % (90 + k, 90 + k, 90 + k))
    for k in range(8): a('v_and_b32 v%d, 0xffff0000, v%d' % (90 + k, 90 + k))
    for k in range(8): a('v_mul_f32 v%d, v%d, v101' % (90 + k, 90 + k))
    for k in range(8): a('v_cvt_pk_bf16_f32 v%d, v%d, v%d' % (90 + k, 90 + k, 90 + k))
    for k in range(8):
        for r in range(4):
            a('v_and_b32 v%d, v%d, v%d' % (48 + 4 * k + r, 90 + k, 80 + r))
    stamp(3)
    for i in range(8):
        a('s_waitcnt vmcnt(%d)' % (7 - i))
        a('v_mfma_f32_16x16x32_bf16 v[84:87], v[%d:%d], v[%d:%d], %s' % (48 + 4 * i, 51 + 4 * i, 16 + 4 * i, 19 + 4 * i, '0' if i == 0 else 'v[84:87]'))
    stamp(4)
    a('v_lshlrev_b32 v90, 5, v1')
    a('v_and_b32 v91, 16, v0')
    a('s_lshl_b32 s52, s27, 9')
    a('v_add3_u32 v90, v90, v91, s52')
    a('s_mov_b64 exec, s[56:57]')
    a('ds_write_b128 v90, v[84:87] offset:%d' % APART)
    a('s_mov_b64 exec, -1')
    set_flag(FLAG_A, 91, 92)
    a('s_cmp_lg_u32 s27, 0')
    a('s_cbranch_scc1 L_A_poll')
    a('v_mov_b32 v89, 0')
    lds_wait(FLAG_A, 92, 89)
    a('v_lshlrev_b32 v90, 3, v0')
    for w in range(4):
        a('ds_read_b64 v[%d:%d], v90 offset:%d' % (92 + 2 * w, 93 + 2 * w, APART + 512 * w))
    a('s_waitcnt lgkmcnt(0)')
    a('v_add_f32 v92, v92, v94'); a('v_add_f32 v93, v93, v95')
    a('v_add_f32 v96, v96, v98'); a('v_add_f32 v97, v97, v99')
    a('v_add_f32 v92, v92, v96'); a('v_add_f32 v93, v93, v97')
    a('s_cmp_lt_u32 s29, 5')
    a('s_cbranch_scc1 L_A_pub')
    a('v_mov_b32 v96, v92'); a('v_mov_b32 v97, v93')
    a('v_permlane32_swap_b32 v92, v96')
    a('v_permlane32_swap_b32 v93, v97')
    a('v_add_f32 v92, v92, v96'); a('v_add_f32 v93, v93, v97')
    a('s_mov_b32 exec_lo, -1'); a('s_mov_b32 exec_hi, 0')
    a.label('L_A_pub')
    a('v_mov_b32 v94, 0')
    a('v_mov_b32 v95, v9')
    a('v_add_u32 v90, s60, v3')
    a('buffer_store_dwordx4 v[92:95], v90, s[32:35], 0 offen %s' % st_flags)
    a('s_mov_b64 exec, -1')
    stamp(5)
    a('s_branch L_A_poll')
    a.label('L_A_none')
    a('v_mov_b32 v89, 0')
    a('v_lshlrev_b32 v15, 2, v0')
    a('ds_write_b32 v15, v89')
    a('s_waitcnt lgkmcnt(0)')
    a('s_barrier')
    a('s_waitcnt vmcnt(0)')
    a('v_add_u32 v9, 0x%x, v9' % TAGC)
    a.label('L_A_poll')
    a('s_mul_i32 s52, s28, 5')
    a('s_lshl_b32 s52, s52, 10')
    a('s_lshl_b32 s53, s27, 8')
    a('s_add_u32 s52, s52, s53')
    a('s_add_u32 s52, s52, %d' % X1Q)
    a('v_lshlrev_b32 v90, 4, v1')
    a('v_add_u32 v91, s52, v90')
    a('v_lshlrev_b32 v90, 10, v2')
    a('v_add_u32 v90, v91, v90')
    a('v_add_u32 v91, 4096, v91')
    a('s_mov_b32 s58, %d' % SPIN_MEM)
    a.label('L_A_pl')
    a('buffer_load_dwordx4 v[92:95], v90, s[32:35], 0 offen %s' % ld_flags)
    a('buffer_load_dwordx4 v[96:99], v91, s[32:35], 0 offen %s' % ld_flags)
    a('s_waitcnt vmcnt(0)')
    a('v_cmp_ne_u32 vcc, v95, v9')
    a('v_cmp_ne_u32 s[52:53], v99, v9')
    a('s_or_b64 vcc, vcc, s[52:53]')
    a('s_cbranch_vccz L_A_pd')
    a('s_sub_u32 s58, s58, 1')
    a('s_cbranch_scc1 L_A_pd')
    if pollsleep: a('s_sleep %d' % pollsleep)
    a('s_branch L_A_pl')
    a.label('L_A_pd')
    stamp(6)
    a('v_permlane32_swap_b32 v92, v93')
    a('v_add_f32 v92, v92, v93')
    a('v_mov_b32 v93, v92')
    a('v_permlane16_swap_b32 v92, v93')
    a('v_add_f32 v92, v92, v93')
    a('v_cmp_gt_u32 vcc, 32, v0')
    a('v_cndmask_b32 v96, v97, v96, vcc')
    a('v_add_f32 v92, v92, v96')
    a('v_cvt_pk_bf16_f32 v92, v92, v92')
    a('v_lshrrev_b32 v93, 5, v0')
    a('v_lshl_add_u32 v93, v1, 1, v93')
    a('s_lshl_b32 s52, s27, 5')
    a('v_add_u32 v93, s52, v93')
    a('v_lshlrev_b32 v93, 1, v93')
    a('ds_write_b16 v93, v92 offset:%d' % QL)
    set_flag(FLAG_Q, 91, 94)
    stamp(7)
    write_stamps(0)
    a('s_endpgm')

    a.label('L_B')
    a('s_setprio %d' % prio[1])
    a('s_lshl_b32 s52, s28, 21')
    a('s_lshl_b32 s53, s29, 16')
    a('s_add_u32 s52, s52, s53')
    a('s_add_u32 s52, s52, %d' % (6144 * 256))
    a('s_add_u32 s44, s6, s52')
    a('s_addc_u32 s45, s7, 0')
    a('s_mov_b32 s46, 65536')
    a('s_mov_b32 s47, 0x20000')
    a('s_lshl_b32 s52, s27, 10')
    a('v_add_u32 v4, s52, v3')
    a('s_barrier')
    a('s_mov_b32 s52, s59')
    for i in range(16):
        a('buffer_load_dwordx4 v[%d:%d], v4, s[44:47], s52 offen %s' % (16 + 4 * i, 19 + 4 * i, ntK))
        if i < 15:
            a('s_add_u32 s52, s52, 4096')
            a('s_and_b32 s52, s52, 0xffff')
    stamp(1)
    a('v_mov_b32 v5, 0')
    lds_wait(FLAG_Q, 84, 5)
    stamp(2)
    a('v_lshlrev_b32 v6, 4, v1')
    a('ds_read_b128 v[80:83], v6 offset:%d' % QL)
    a('s_waitcnt lgkmcnt(0)')
    for i in range(16):
        a('s_waitcnt vmcnt(%d)' % (15 - i))
        k = 16 + 4 * i
        a('v_dot2_f32_bf16 v%d, v%d, v80, 0' % (84 + i, k))
        for r in range(1, 4):
            a('v_dot2_f32_bf16 v%d, v%d, v%d, v%d' % (84 + i, k + r, 80 + r, 84 + i))
    stamp(3)
    for i in range(8):
        a('v_add_f32_dpp v%d, v%d, v%d row_ror:8 row_mask:0xf bank_mask:0x3' % (84 + i, 84 + i, 84 + i))
        a('v_add_f32_dpp v%d, v%d, v%d row_ror:8 row_mask:0xf bank_mask:0xc' % (84 + i, 92 + i, 92 + i))
    for i in range(4):
        a('v_add_f32_dpp v%d, v%d, v%d row_half_mirror row_mask:0xf bank_mask:0x5' % (84 + i, 84 + i, 84 + i))
        a('v_add_f32_dpp v%d, v%d, v%d row_half_mirror row_mask:0xf bank_mask:0xa' % (84 + i, 88 + i, 88 + i))
    for i in range(4):
        a('v_add_f32_dpp v%d, v%d, v%d quad_perm:[2,3,0,1] row_mask:0xf bank_mask:0xf' % (88 + i, 84 + i, 84 + i))
    a('v_and_b32 v6, 2, v0')
    a('v_cmp_eq_u32 vcc, 0, v6')
    a('v_cndmask_b32 v84, v90, v88, vcc')
    a('v_cndmask_b32 v85, v91, v89, vcc')
    a('v_and_b32 v6, 1, v0')
    a('v_add_f32_dpp v88, v84, v84 quad_perm:[1,0,3,2] row_mask:0xf bank_mask:0xf')
    a('v_add_f32_dpp v89, v85, v85 quad_perm:[1,0,3,2] row_mask:0xf bank_mask:0xf')
    a('v_cmp_eq_u32 vcc, 0, v6')
    a('v_cndmask_b32 v84, v89, v88, vcc')
    a('v_cvt_pk_bf16_f32 v84, v84, v84')
    a('v_and_b32 v84, 0xffff0000, v84')
    a('v_mul_f32 v84, 0x%x, v84' % SCALE)
    a('v_cvt_pk_bf16_f32 v84, v84, v84')
    a('v_and_b32 v84, 0xffff0000, v84')
    a('v_mov_b32 v85, v84')
    allreduce('v_max_f32', 85, 86)
    a('v_sub_f32 v86, v84, v85')
    a('v_mul_f32 v86, 0x%x, v86' % LOG2E)
    a('v_exp_f32 v86, v86')
    a('v_cvt_pk_bf16_f32 v87, v86, v86')
    a('s_lshl_b32 s52, s27, 8')
    a('v_lshlrev_b32 v6, 2, v0')
    a('v_add_u32 v6, s52, v6')
    a('ds_write_b32 v6, v87 offset:%d' % PL)
    allreduce('v_add_f32', 86, 88)
    a('v_mov_b32 v88, v85')
    a('v_mov_b32 v89, v86')
    a('s_lshl_b32 s52, s27, 3')
    a('v_mov_b32 v6, s52')
    a('ds_write_b64 v6, v[88:89] offset:%d' % ML)
    set_flag(FLAG_P, 6, 7)
    stamp(4)
    write_stamps(1)
    a('s_endpgm')

    a.label('L_CD')
    a('s_setprio %d' % prio[2])
    a('buffer_load_dword v9, off, s[32:35], 0 sc1')
    srd(36, 's4', 's5', 1280)
    a('s_lshl_b32 s52, s2, 3')
    a('v_and_b32 v7, 1, v0')
    a('v_lshlrev_b32 v7, 2, v7')
    a('v_add_u32 v10, s52, v7')
    a('buffer_load_dword v8, v10, s[36:39], 0 offen')
    a('s_lshl_b32 s52, s28, 21')
    a('s_lshl_b32 s53, s29, 16')
    a('s_add_u32 s52, s52, s53')
    a('s_add_u32 s52, s52, %d' % (6144 * 256))
    a('s_add_u32 s44, s8, s52')
    a('s_addc_u32 s45, s9, 0')
    a('s_mov_b32 s46, 65536')
    a('s_mov_b32 s47, 0x20000')
    a('s_lshl_b32 s52, s27, 10')
    a('v_add_u32 v4, s52, v3')
    a('s_cmp_lt_u32 s29, 5')
    a('s_cbranch_scc0 L_C_ffn')
    a('s_mul_i32 s52, s28, %d' % (128 * 1280))
    a('s_lshl_b32 s53, s29, 8')
    a('s_add_u32 s52, s52, s53')
    a('s_add_u32 s40, s12, s52')
    a('s_addc_u32 s41, s13, 0')
    a('s_sub_u32 s42, 5242880, s52')
    a('s_mov_b32 s43, 0x20000')
    a('s_mul_i32 s52, s27, %d' % (32 * 1280))
    a('v_mul_u32_u24 v5, %d, v2' % (8 * 1280))
    a('v_lshlrev_b32 v6, 4, v1')
    a('v_add3_u32 v5, v5, v6, s52')
    a('v_add_u32 v6, 5120, v5')
    a('s_branch L_C_go')
    a.label('L_C_ffn')
    a('s_min_u32 s54, s28, 26')
    a('s_mul_i32 s52, s54, %d' % (64 * 1280))
    a('s_lshl_b32 s53, s30, 9')
    a('s_add_u32 s52, s52, s53')
    a('s_add_u32 s40, s18, s52')
    a('s_addc_u32 s41, s19, 0')
    a('s_sub_u32 s42, 2211840, s52')
    a('s_mov_b32 s43, 0x20000')
    a('s_mul_i32 s52, s27, %d' % (16 * 1280))
    a('v_mul_u32_u24 v5, %d, v2' % (4 * 1280))
    a('v_lshlrev_b32 v6, 4, v1')
    a('v_add3_u32 v5, v5, v6, s52')
    a('v_add_u32 v6, 256, v5')
    a('s_cmp_eq_u32 s30, 2')
    a('s_cbranch_scc0 L_C_f1')
    a('v_mov_b32 v6, 0x7ff00000')
    a.label('L_C_f1')
    a('s_cmp_ge_u32 s28, 27')
    a('s_cbranch_scc0 L_C_go')
    a('v_mov_b32 v5, 0x7ff00000')
    a('v_mov_b32 v6, 0x7ff00000')
    a.label('L_C_go')
    a('s_barrier')
    a('s_mov_b32 s52, s59')
    for i in range(16):
        a('buffer_load_dwordx4 v[%d:%d], v4, s[44:47], s52 offen %s' % (16 + 4 * i, 19 + 4 * i, ntV))
        if i < 15:
            a('s_add_u32 s52, s52, 4096')
            a('s_and_b32 s52, s52, 0xffff')
    for i in range(8):
        a('buffer_load_dwordx4 v[%d:%d], v%d, s[40:43], 0 offen offset:%d %s' % (80 + 4 * i, 83 + 4 * i, 5 if i < 4 else 6, (i % 4) * 1280, ntD))
    stamp(1)
    masks(128, 148)
    a('v_mov_b32 v11, 0')
    lds_wait(FLAG_P, 148, 11)
    stamp(2)
    a('s_lshl_b32 s52, s27, 8')
    a('v_lshlrev_b32 v12, 6, v2')
    a('v_add_u32 v12, s52, v12')
    for k in range(4):
        a('ds_read_b128 v[%d:%d], v12 offset:%d' % (112 + 4 * k, 115 + 4 * k, PL + 16 * k))
    a('ds_read_b128 v[148:151], v11 offset:%d' % ML)
    a('ds_read_b128 v[152:155], v11 offset:%d' % (ML + 16))
    a('s_waitcnt lgkmcnt(0)')
    a('v_max_f32 v156, v148, v150'); a('v_max_f32 v157, v152, v154'); a('v_max_f32 v156, v156, v157')
    for k in range(4):
        a('v_sub_f32 v%d, v%d, v156' % (148 + 2 * k, 148 + 2 * k))
    for k in range(4):
        a('v_mul_f32 v%d, 0x%x, v%d' % (148 + 2 * k, LOG2E, 148 + 2 * k))
    for k in range(4):
        a('v_exp_f32 v%d, v%d' % (148 + 2 * k, 148 + 2 * k))
    a('v_mul_f32 v157, v148, v149')
    a('v_fmac_f32 v157, v150, v151'); a('v_fmac_f32 v157, v152, v153'); a('v_fmac_f32 v157, v154, v155')
    a('v_mov_b32 v158, v148')
    for k in range(1, 4):
        a('s_cmp_eq_u32 s27, %d' % k)
        a('s_cselect_b64 vcc, -1, 0')
        a('v_cndmask_b32 v158, v158, v%d, vcc' % (148 + 2 * k))
    def aop(i):
        b = 132 + 4 * (i & 1)
        for r in range(4):
            a('v_and_b32 v%d, v%d, v%d' % (b + r, 112 + i, 128 + r))
    aop(0)
    for i in range(16):
        if i < 15: aop(i + 1)
        a('s_waitcnt vmcnt(%d)' % (8 + 15 - i))
        b = 132 + 4 * (i & 1)
        a('v_mfma_f32_16x16x32_bf16 v[140:143], v[%d:%d], v[%d:%d], %s' % (b, b + 3, 16 + 4 * i, 19 + 4 * i, '0' if i == 0 else 'v[140:143]'))
    stamp(3)
    a('v_add_u32 v9, 0x%x, v9' % TAGC)
    a('v_lshlrev_b32 v12, 5, v1')
    a('v_and_b32 v13, 16, v0')
    a('s_lshl_b32 s52, s27, 9')
    a('v_add3_u32 v12, v12, v13, s52')
    for r in range(4):
        a('v_mul_f32 v%d, v%d, v158' % (140 + r, 140 + r))
    a('s_mov_b32 exec_lo, -1'); a('s_mov_b32 exec_hi, 0')
    a('ds_write_b128 v12, v[140:143] offset:%d' % PVP)
    a('s_mov_b64 exec, -1')
    a('s_waitcnt lgkmcnt(0)')
    a('s_barrier')
    a('s_cmp_lg_u32 s27, 0')
    a('s_cbranch_scc1 L_C_x2done')
    a('v_and_b32 v12, 31, v0')
    a('v_lshlrev_b32 v12, 4, v12')
    for w in range(4):
        a('ds_read_b128 v[%d:%d], v12 offset:%d' % (16 + 4 * w, 19 + 4 * w, PVP + 512 * w))
    a('s_lshl_b32 s52, s28, 3')
    a('s_add_u32 s52, s52, s29')
    a('s_lshl_b32 s52, s52, 10')
    a('s_add_u32 s52, s52, %d' % X2)
    a('v_add_u32 v13, s52, v3')
    a('v_cmp_gt_u32 vcc, 32, v0')
    a('s_waitcnt lgkmcnt(0)')
    for r in range(4):
        a('v_add_f32 v%d, v%d, v%d' % (16 + r, 16 + r, 20 + r))
        a('v_add_f32 v%d, v%d, v%d' % (24 + r, 24 + r, 28 + r))
    for r in range(4):
        a('v_add_f32 v%d, v%d, v%d' % (16 + r, 16 + r, 24 + r))
    a('v_cndmask_b32 v20, v19, v16, vcc')
    a('v_cndmask_b32 v21, v156, v17, vcc')
    a('v_cndmask_b32 v22, v157, v18, vcc')
    a('v_mov_b32 v23, v9')
    a('buffer_store_dwordx4 v[20:23], v13, s[32:35], 0 offen %s' % st_flags)
    a.label('L_C_x2done')
    stamp(4)
    a('s_cmp_lt_u32 s29, 5')
    a('s_cbranch_scc0 L_D_ffn')
    a('v_and_b32 v12, 7, v0')
    a('v_lshlrev_b32 v12, 10, v12')
    a('v_lshrrev_b32 v13, 3, v0')
    a('v_lshlrev_b32 v13, 4, v13')
    a('s_lshl_b32 s52, s28, 13')
    a('s_lshl_b32 s53, s27, 7')
    a('s_add_u32 s52, s52, s53')
    a('s_add_u32 s52, s52, %d' % X2)
    a('v_add3_u32 v12, v12, v13, s52')
    a('s_mov_b32 s58, %d' % SPIN_MEM)
    a.label('L_D_pl')
    a('buffer_load_dwordx4 v[16:19], v12, s[32:35], 0 offen %s' % ld_flags)
    a('buffer_load_dwordx4 v[20:23], v12, s[32:35], 0 offen offset:512 %s' % ld_flags)
    a('s_waitcnt vmcnt(0)')
    a('v_cmp_ne_u32 vcc, v19, v9')
    a('v_cmp_ne_u32 s[52:53], v23, v9')
    a('s_or_b64 vcc, vcc, s[52:53]')
    a('s_cbranch_vccz L_D_pd')
    a('s_sub_u32 s58, s58, 1')
    a('s_cbranch_scc1 L_D_pd')
    if pollsleep: a('s_sleep %d' % pollsleep)
    a('s_branch L_D_pl')
    a.label('L_D_pd')
    stamp(5)
    def red8(op, v):
        return ['%s_dpp v%d, v%d, v%d row_half_mirror row_mask:0xf bank_mask:0xf' % (op, v, v, v),
                '%s_dpp v%d, v%d, v%d quad_perm:[1,0,3,2] row_mask:0xf bank_mask:0xf' % (op, v, v, v),
                '%s_dpp v%d, v%d, v%d quad_perm:[2,3,0,1] row_mask:0xf bank_mask:0xf' % (op, v, v, v)]
    a('v_mov_b32 v24, v21')
    for s_ in red8('v_max_f32', 24): a(s_)
    a('v_sub_f32 v21, v21, v24')
    a('v_mul_f32 v21, 0x%x, v21' % LOG2E)
    a('v_exp_f32 v21, v21')
    vals = (22, 16, 17, 18, 20)
    for v in vals: a('v_mul_f32 v%d, v%d, v21' % (v, v))
    for st in range(3):
        for v in vals: a(red8('v_add_f32', v)[st])
    a('v_rcp_f32 v22, v22')
    for v in vals[1:]: a('v_mul_f32 v%d, v%d, v22' % (v, v))
    for v in vals[1:]: a('v_cvt_pk_bf16_f32 v%d, v%d, v%d' % (v, v, v))
    ov = (16, 17, 18, 20)
    for i in range(8):
        for r in range(4):
            if i < 4: a('v_and_b32 v%d, v%d, v%d' % (24 + 4 * i + r, ov[i], 128 + r))
            else: a('v_and_b32_dpp v%d, v%d, v%d row_ror:8 row_mask:0xf bank_mask:0xf' % (24 + 4 * i + r, ov[i - 4], 128 + r))
    for i in range(8):
        a('v_mfma_f32_16x16x32_bf16 v[140:143], v[%d:%d], v[%d:%d], %s' % (24 + 4 * i, 27 + 4 * i, 80 + 4 * i, 83 + 4 * i, '0' if i == 0 else 'v[140:143]'))
    a('s_lshl_b32 s60, s29, 5')
    a('s_add_u32 s60, s60, s28')
    a('s_lshl_b32 s60, s60, 10')
    a('s_add_u32 s60, s60, %d' % X3A)
    a('s_mov_b32 s61, 1')
    a('s_branch L_D_red')
    a.label('L_D_ffn')
    a('s_cmp_ge_u32 s28, 27')
    a('s_cbranch_scc1 L_final')
    a('v_and_b32 v12, 3, v0')
    a('v_min_u32 v13, 2, v12')
    a('v_lshlrev_b32 v13, 10, v13')
    a('v_lshlrev_b32 v14, 5, v2')
    a('s_mul_i32 s52, s28, 3072')
    a('s_lshl_b32 s53, s27, 7')
    a('s_add_u32 s52, s52, s53')
    a('s_add_u32 s52, s52, %d' % X1H)
    a('v_add3_u32 v13, v13, v14, s52')
    a('s_mov_b32 s58, %d' % SPIN_MEM)
    a.label('L_F_pl')
    a('buffer_load_dwordx4 v[16:19], v13, s[32:35], 0 offen %s' % ld_flags)
    a('buffer_load_dwordx4 v[20:23], v13, s[32:35], 0 offen offset:16 %s' % ld_flags)
    a('s_waitcnt vmcnt(0)')
    a('v_cmp_ne_u32 vcc, v19, v9')
    a('v_cmp_ne_u32 s[52:53], v23, v9')
    a('s_or_b64 vcc, vcc, s[52:53]')
    a('s_cbranch_vccz L_F_pd')
    a('s_sub_u32 s58, s58, 1')
    a('s_cbranch_scc1 L_F_pd')
    if pollsleep: a('s_sleep %d' % pollsleep)
    a('s_branch L_F_pl')
    a.label('L_F_pd')
    stamp(5)
    a('v_cmp_gt_u32 vcc, 3, v12')
    hv = (16, 17, 20, 21)
    for v in hv: a('v_cndmask_b32 v%d, 0, v%d, vcc' % (v, v))
    for v in hv: a('v_add_f32_dpp v%d, v%d, v%d quad_perm:[1,0,3,2] row_mask:0xf bank_mask:0xf' % (v, v, v))
    for v in hv: a('v_add_f32_dpp v%d, v%d, v%d quad_perm:[2,3,0,1] row_mask:0xf bank_mask:0xf' % (v, v, v))
    for v in hv: a('v_cvt_pk_bf16_f32 v%d, v%d, v%d' % (v, v, v))
    for v in hv: a('v_and_b32 v%d, 0xffff0000, v%d' % (v, v))
    for k, v in enumerate(hv): a('v_mul_f32 v%d, 0x%x, v%d' % (24 + k, LOG2E ^ 0x80000000, v))
    for k in range(4): a('v_exp_f32 v%d, v%d' % (24 + k, 24 + k))
    for k in range(4): a('v_add_f32 v%d, 1.0, v%d' % (24 + k, 24 + k))
    for k in range(4): a('v_rcp_f32 v%d, v%d' % (24 + k, 24 + k))
    for k, v in enumerate(hv): a('v_mul_f32 v%d, v%d, v%d' % (v, v, 24 + k))
    for v in hv: a('v_cvt_pk_bf16_f32 v%d, v%d, v%d' % (v, v, v))
    for i in range(4):
        for r in range(4):
            a('v_and_b32 v%d, v%d, v%d' % (24 + 4 * i + r, hv[i], 128 + r))
    for i in range(4):
        a('v_mfma_f32_16x16x32_bf16 v[140:143], v[%d:%d], v[%d:%d], %s' % (24 + 4 * i, 27 + 4 * i, 80 + 4 * i, 83 + 4 * i, '0' if i == 0 else 'v[140:143]'))
        a('v_mfma_f32_16x16x32_bf16 v[144:147], v[%d:%d], v[%d:%d], %s' % (24 + 4 * i, 27 + 4 * i, 96 + 4 * i, 99 + 4 * i, '0' if i == 0 else 'v[144:147]'))
    a('s_lshl_b32 s60, s30, 6')
    a('s_add_u32 s60, s60, s28')
    a('s_lshl_b32 s60, s60, 10')
    a('s_add_u32 s60, s60, %d' % X3F)
    a('s_cmp_eq_u32 s30, 2')
    a('s_cselect_b32 s61, 1, 2')
    a.label('L_D_red')
    a('v_lshlrev_b32 v12, 5, v1')
    a('v_and_b32 v13, 16, v0')
    a('s_lshl_b32 s52, s27, 10')
    a('v_add3_u32 v12, v12, v13, s52')
    a('s_nop 7')
    a('s_mov_b32 exec_lo, -1'); a('s_mov_b32 exec_hi, 0')
    a('ds_write_b128 v12, v[140:143] offset:%d' % FIN)
    a('s_cmp_eq_u32 s61, 2')
    a('s_cbranch_scc0 L_D_w1')
    a('ds_write_b128 v12, v[144:147] offset:%d' % (FIN + 512))
    a.label('L_D_w1')
    a('s_mov_b64 exec, -1')
    a('s_waitcnt lgkmcnt(0)')
    a('s_barrier')
    stamp(6)
    a('s_and_b32 s52, s27, 1')
    a('s_cmp_lg_u32 s52, 0')
    a('s_cbranch_scc1 L_final')
    a('s_lshr_b32 s52, s27, 1')
    a('s_cmp_ge_u32 s52, s61')
    a('s_cbranch_scc1 L_final')
    a('s_lshl_b32 s53, s52, 9')
    a('v_lshlrev_b32 v12, 3, v0')
    a('v_add_u32 v12, s53, v12')
    for w in range(4):
        a('ds_read_b64 v[%d:%d], v12 offset:%d' % (16 + 2 * w, 17 + 2 * w, FIN + 1024 * w))
    a('s_lshl_b32 s53, s52, 15')
    a('s_add_u32 s53, s53, s60')
    a('v_add_u32 v13, s53, v3')
    a('s_waitcnt lgkmcnt(0)')
    a('v_add_f32 v16, v16, v18'); a('v_add_f32 v17, v17, v19')
    a('v_add_f32 v20, v20, v22'); a('v_add_f32 v21, v21, v23')
    a('v_add_f32 v16, v16, v20'); a('v_add_f32 v17, v17, v21')
    a('v_mov_b32 v18, 0')
    a('v_mov_b32 v19, v9')
    a('buffer_store_dwordx4 v[16:19], v13, s[32:35], 0 offen %s' % st_flags)
    stamp(7)
    a.label('L_final')
    a('s_cmp_eq_u32 s27, 1')
    a('s_cbranch_scc0 L_CD_end')
    a('s_cmp_lt_u32 s2, 160')
    a('s_cbranch_scc0 L_CD_end')
    a('s_lshr_b32 s52, s2, 5')
    a('s_and_b32 s53, s2, 31')
    a('s_lshl_b32 s52, s52, 15')
    a('s_lshl_b32 s53, s53, 5')
    a('s_add_u32 s52, s52, s53')
    a('v_lshrrev_b32 v12, 1, v0')
    a('v_and_b32 v13, 1, v0')
    a('v_lshlrev_b32 v13, 4, v13')
    a('v_add_u32 v13, s52, v13')
    a('v_min_u32 v14, 26, v12')
    a('v_lshlrev_b32 v14, 10, v14')
    a('v_lshlrev_b32 v15, 10, v12')
    a('v_add_u32 v14, v14, v13')
    a('v_add_u32 v15, v15, v13')
    a('v_add_u32 v14, 0x%x, v14' % X3F)
    a('v_add_u32 v15, 0x%x, v15' % X3A)
    a('s_mov_b32 s58, %d' % SPIN_MEM)
    a.label('L_R_pl')
    a('buffer_load_dwordx4 v[16:19], v15, s[32:35], 0 offen %s' % ld_flags)
    a('buffer_load_dwordx4 v[20:23], v14, s[32:35], 0 offen %s' % ld_flags)
    a('s_waitcnt vmcnt(0)')
    a('v_cmp_ne_u32 vcc, v19, v9')
    a('v_cmp_ne_u32 s[52:53], v23, v9')
    a('s_or_b64 vcc, vcc, s[52:53]')
    a('s_cbranch_vccz L_R_pd')
    a('s_sub_u32 s58, s58, 1')
    a('s_cbranch_scc1 L_R_pd')
    if pollsleep: a('s_sleep %d' % pollsleep)
    a('s_branch L_R_pl')
    a.label('L_R_pd')
    stamp(8)
    a('v_cmp_gt_u32 vcc, 27, v12')
    a('v_cndmask_b32 v20, 0, v20, vcc')
    a('v_cndmask_b32 v21, 0, v21, vcc')
    fv = (16, 17, 20, 21)
    for r in (2, 4, 8):
        for v in fv: a('v_add_f32_dpp v%d, v%d, v%d row_ror:%d row_mask:0xf bank_mask:0xf' % (v, v, v, r))
    for k, v in enumerate(fv): a('v_mov_b32 v%d, v%d' % (24 + k, v))
    for k, v in enumerate(fv): a('v_permlane16_swap_b32 v%d, v%d' % (v, 24 + k))
    for k, v in enumerate(fv): a('v_add_f32 v%d, v%d, v%d' % (v, v, 24 + k))
    for k, v in enumerate(fv): a('v_mov_b32 v%d, v%d' % (24 + k, v))
    for k, v in enumerate(fv): a('v_permlane32_swap_b32 v%d, v%d' % (v, 24 + k))
    for k, v in enumerate(fv): a('v_add_f32 v%d, v%d, v%d' % (v, v, 24 + k))
    a('v_cvt_pk_bf16_f32 v16, v16, v17')
    a('v_cvt_pk_bf16_f32 v20, v20, v21')
    a('v_lshlrev_b32 v24, 16, v8'); a('v_and_b32 v25, 0xffff0000, v8')
    a('v_lshlrev_b32 v26, 16, v16'); a('v_and_b32 v27, 0xffff0000, v16')
    a('v_add_f32 v24, v24, v26'); a('v_add_f32 v25, v25, v27')
    a('v_cvt_pk_bf16_f32 v24, v24, v25')
    a('v_lshlrev_b32 v26, 16, v20'); a('v_and_b32 v27, 0xffff0000, v20')
    a('v_lshlrev_b32 v28, 16, v24'); a('v_and_b32 v29, 0xffff0000, v24')
    a('v_add_f32 v26, v26, v28'); a('v_add_f32 v27, v27, v29')
    a('v_cvt_pk_bf16_f32 v26, v26, v27')
    srd(48, 's20', 's21', 1280)
    a('s_mov_b64 exec, 3')
    a('buffer_store_dword v26, v10, s[48:51], 0 offen')
    a('s_cmp_eq_u32 s2, 0')
    a('s_cbranch_scc0 L_CD_end')
    a('s_mov_b64 exec, 1')
    a('buffer_store_dword v9, off, s[32:35], 0 sc1')
    a.label('L_CD_end')
    stamp(9)
    write_stamps(2)
    a.label('L_end')
    a('s_endpgm')
    lines = hazard.fix(a.lines)
    return wrap('\n'.join(lines) + '\n', 256, 768, LDS_BYTES, 160, sgpr=100)

if __name__ == '__main__':
    out = sys.argv[1] if len(sys.argv) > 1 else 'k.s'
    kw = {}
    for arg in sys.argv[2:]:
        k, v = arg.split('=')
        kw[k] = eval(v)
    open(out, 'w').write(gen(**kw))
```

```python
import sys
from asmlib import *
import hazard

FLAG_A, FLAG_Q, FLAG_P = 0, 16, 32
QL, ML, PL, APART, PVP, FIN = 64, 320, 512, 2048, 4096, 6144
LDS_BYTES = 10240
X1Q, X1H, X2, X3A, X3F, STAMP = 0x1000, 0x30000, 0x50000, 0x90000, 0xC0000, 0x100000
WS_RECORDS = 0x200000
TAGC = 0x9E3779B1
LOG2E = 0x3FB8AA3B
SCALE = 0x3DB504F3
INV640 = 0x3ACCCCCD
EPS = 0x3727C5AC
SPIN_LDS = 1 << 20
SPIN_MEM = 1 << 16

def gen(stamps=False, ntA='nt', ntK='nt', ntV='nt', ntD='nt', prio=(3, 2, 0), rot=True, st_flags='sc1', ld_flags='sc1', pollsleep=0, dbgtime=False, dbgwg=0):
    a = Asm()
    stamp_idx = [0]
    if dbgtime: stamps = True
    def stamp(k):
        if stamps: a('s_memrealtime s[%d:%d]' % (64 + 2 * k, 65 + 2 * k))
    def srd(r, lo, hi, rec):
        a('s_mov_b32 s%d, %s' % (r, lo)); a('s_mov_b32 s%d, %s' % (r + 1, hi))
        a('s_mov_b32 s%d, %s' % (r + 2, rec)); a('s_mov_b32 s%d, 0x20000' % (r + 3))
    def write_dbg(role):
        slots = {0: {0: 0, 2: 1, 4: 2, 5: 3, 6: 4}, 1: {1: 5, 2: 6, 3: 7, 4: 8}, 2: {1: 9, 2: 10, 3: 11, 5: 12, 6: 13, 8: 14, 9: 15}}[role]
        L = a.newlabel('L_nodbg')
        a('s_cmp_eq_u32 s2, %d' % dbgwg)
        a('s_cbranch_scc0 %s' % L)
        a('s_cmp_eq_u32 s27, %d' % (1 if role == 2 else 0))
        a('s_cbranch_scc0 %s' % L)
        a('s_waitcnt lgkmcnt(0)')
        a('s_mov_b64 exec, -1')
        a('v_mov_b32 v1, 0')
        mask = 0
        for k, sl in slots.items():
            a('v_writelane_b32 v1, s%d, %d' % (64 + 2 * k, sl)); mask |= 1 << sl
        srd(48, 's22', 's23', 256)
        a('v_lshlrev_b32 v2, 2, v0')
        a('s_mov_b64 exec, 0x%x' % mask)
        a('buffer_store_dword v1, v2, s[48:51], 0 offen')
        a('s_waitcnt vmcnt(0)')
        a.label(L)
    def write_stamps(role=0):
        if not stamps: return
        if dbgtime: return write_dbg(role)
        a('s_waitcnt lgkmcnt(0)')
        a('s_mov_b64 exec, -1')
        a('v_mov_b32 v1, 0')
        for k in range(16):
            a('v_writelane_b32 v1, s%d, %d' % (64 + 2 * k, k))
        a('s_lshl_b32 s52, s2, 4')
        a('s_lshl_b32 s53, s26, 2')
        a('s_add_u32 s52, s52, s53')
        a('s_add_u32 s52, s52, s27')
        a('s_lshl_b32 s52, s52, 6')
        a('s_add_u32 s52, s52, %d' % STAMP)
        a('v_lshlrev_b32 v2, 2, v0')
        a('v_add_u32 v2, s52, v2')
        a('s_mov_b64 exec, 0xffff')
        a('buffer_store_dword v1, v2, s[32:35], 0 offen')
        a('s_waitcnt vmcnt(0)')
    def lds_wait(off, tmp, zero):
        L = a.newlabel('L_lw'); D = a.newlabel('L_lwd')
        a('s_mov_b32 s58, %d' % SPIN_LDS)
        a.label(L)
        a('ds_read_b128 v[%d:%d], v%d offset:%d' % (tmp, tmp + 3, zero, off))
        a('s_waitcnt lgkmcnt(0)')
        a('v_and_b32 v%d, v%d, v%d' % (tmp, tmp, tmp + 1))
        a('v_and_b32 v%d, v%d, v%d' % (tmp + 2, tmp + 2, tmp + 3))
        a('v_and_b32 v%d, v%d, v%d' % (tmp, tmp, tmp + 2))
        a('v_cmp_ne_u32 vcc, 0, v%d' % tmp)
        a('s_cbranch_vccnz %s' % D)
        a('s_sub_u32 s58, s58, 1')
        a('s_cbranch_scc1 %s' % D)
        a('s_sleep 1')
        a('s_branch %s' % L)
        a.label(D)
    def set_flag(off, zero, one):
        a('s_lshl_b32 s52, s27, 2')
        a('v_mov_b32 v%d, s52' % zero)
        a('v_mov_b32 v%d, 1' % one)
        a('ds_write_b32 v%d, v%d offset:%d' % (zero, one, off))
    def allreduce(op, v, t):
        for r in (8, 4, 2, 1):
            a('%s_dpp v%d, v%d, v%d row_ror:%d row_mask:0xf bank_mask:0xf' % (op, v, v, v, r))
        a('v_mov_b32 v%d, v%d' % (t, v))
        a('v_permlane16_swap_b32 v%d, v%d' % (v, t))
        a('%s v%d, v%d, v%d' % (op, v, v, t))
        a('v_mov_b32 v%d, v%d' % (t, v))
        a('v_permlane32_swap_b32 v%d, v%d' % (v, t))
        a('%s v%d, v%d, v%d' % (op, v, v, t))
    def masks(m, tmp, half_only_sreg=None, half_only=True):
        a('v_and_b32 v%d, 1, v0' % tmp)
        a('v_mov_b32 v%d, 0xffff' % (tmp + 1))
        a('v_lshlrev_b32 v%d, 4, v%d' % (tmp, tmp))
        a('v_lshlrev_b32 v%d, v%d, v%d' % (tmp + 1, tmp, tmp + 1))
        if half_only_sreg is not None:
            a('v_and_b32 v%d, %s, v0' % (tmp, half_only_sreg))
            a('v_cmp_eq_u32 vcc, 0, v%d' % tmp)
            a('v_cndmask_b32 v%d, 0, v%d, vcc' % (tmp + 1, tmp + 1))
        elif half_only:
            a('v_and_b32 v%d, 8, v0' % tmp)
            a('v_cmp_eq_u32 vcc, 0, v%d' % tmp)
            a('v_cndmask_b32 v%d, 0, v%d, vcc' % (tmp + 1, tmp + 1))
        a('v_bfe_u32 v%d, v0, 1, 2' % tmp)
        for r in range(4):
            a('v_cmp_eq_u32 vcc, %d, v%d' % (r, tmp))
            a('v_cndmask_b32 v%d, 0, v%d, vcc' % (m + r, tmp + 1))

    a('s_cmp_ge_u32 s2, 256')
    a('s_cbranch_scc1 L_end')
    if stamps:
        for k in range(1, 16): a('s_mov_b32 s%d, 0' % (64 + 2 * k))
    stamp(0)
    a('s_load_dwordx16 s[4:19], s[0:1], 0')
    a('s_load_dwordx4 s[20:23], s[0:1], 64')
    a('s_load_dwordx2 s[24:25], s[0:1], 80')
    a('v_lshrrev_b32 v1, 6, v0')
    a('v_and_b32 v0, 63, v0')
    a('v_readfirstlane_b32 s26, v1')
    a('s_and_b32 s28, s2, 7')
    a('s_lshl_b32 s28, s28, 2')
    a('s_lshr_b32 s29, s2, 6')
    a('s_add_u32 s28, s28, s29')
    a('s_lshr_b32 s29, s2, 3')
    a('s_and_b32 s59, s29, 15')
    if not rot: a('s_mov_b32 s59, 0')
    a('s_lshl_b32 s59, s59, 12')
    a('s_and_b32 s29, s29, 7')
    a('s_sub_u32 s30, s29, 5')
    a('s_and_b32 s27, s26, 3')
    a('s_lshr_b32 s26, s26, 2')
    a('v_and_b32 v1, 15, v0')
    a('v_lshrrev_b32 v2, 4, v0')
    a('v_lshlrev_b32 v3, 4, v0')
    a('s_waitcnt lgkmcnt(0)')
    srd(32, 's24', 's25', WS_RECORDS)
    a('s_cmp_eq_u32 s26, 1')
    a('s_cbranch_scc1 L_B')
    a('s_cmp_eq_u32 s26, 2')
    a('s_cbranch_scc1 L_CD')

    a('s_setprio %d' % prio[0])
    a('buffer_load_dword v9, off, s[32:35], 0 sc1')
    srd(36, 's4', 's5', 1280)
    a('s_cmp_lt_u32 s29, 5')
    a('s_cbranch_scc0 L_A_ffn')
    a('s_lshl_b32 s52, s28, 8')
    a('s_add_u32 s40, s10, s52')
    a('s_addc_u32 s41, s11, 0')
    a('s_sub_u32 s42, 5242880, s52')
    a('s_mov_b32 s43, 0x20000')
    a('s_mov_b32 s53, 8192')
    a('s_mov_b32 s54, 4')
    a('s_lshl_b32 s55, s29, 7')
    a('s_lshl_b32 s52, s27, 5')
    a('s_add_u32 s55, s55, s52')
    a('s_mov_b32 s56, -1')
    a('s_mov_b32 s57, 0')
    a('s_mov_b32 s31, 8')
    a('s_mul_i32 s60, s28, 5')
    a('s_add_u32 s60, s60, s29')
    a('s_lshl_b32 s60, s60, 10')
    a('s_add_u32 s60, s60, %d' % X1Q)
    a('s_branch L_A_go')
    a.label('L_A_ffn')
    a('s_cmp_ge_u32 s28, 27')
    a('s_cbranch_scc1 L_A_none')
    a('s_lshl_b32 s52, s28, 7')
    a('s_add_u32 s40, s16, s52')
    a('s_addc_u32 s41, s17, 0')
    a('s_sub_u32 s42, 2211840, s52')
    a('s_mov_b32 s43, 0x20000')
    a('s_mov_b32 s53, 3456')
    a('s_mov_b32 s54, 3')
    a('s_lshl_b32 s55, s30, 8')
    a('s_lshl_b32 s52, s27, 6')
    a('s_add_u32 s55, s55, s52')
    a('s_mov_b32 s56, 0x00ff00ff')
    a('s_mov_b32 s57, 0xff00ff00')
    a('s_mov_b32 s31, 0')
    a('s_mul_i32 s60, s28, 3')
    a('s_add_u32 s60, s60, s30')
    a('s_lshl_b32 s60, s60, 10')
    a('s_add_u32 s60, s60, %d' % X1H)
    a.label('L_A_go')
    a('v_lshrrev_b32 v14, s54, v0')
    a('s_lshl_b32 s52, 1, s54')
    a('s_sub_u32 s52, s52, 1')
    a('v_and_b32 v15, s52, v0')
    a('v_lshlrev_b32 v14, 3, v14')
    a('v_add_u32 v14, s55, v14')
    a('v_mul_lo_u32 v88, v14, s53')
    a('v_lshlrev_b32 v15, 4, v15')
    a('v_add_u32 v88, v88, v15')
    a('v_lshlrev_b32 v14, 1, v14')
    a('v_lshlrev_b32 v15, 2, v0')
    a('buffer_load_dwordx4 v[4:7], v3, s[36:39], 0 offen')
    a('buffer_load_dword v8, v15, s[36:39], 0 offen offset:1024')
    a('buffer_load_dwordx4 v[10:13], v14, s[36:39], 0 offen')
    a('s_mov_b32 s52, 0')
    for i in range(8):
        a('buffer_load_dwordx4 v[%d:%d], v88, s[40:43], s52 offen %s' % (16 + 4 * i, 19 + 4 * i, ntA))
        if i < 7: a('s_add_u32 s52, s52, s53')
    stamp(1)
    a('v_mov_b32 v89, 0')
    a('ds_write_b32 v15, v89')
    a('s_waitcnt lgkmcnt(0)')
    a('s_barrier')
    masks(80, 90, half_only_sreg='s31')
    a('s_waitcnt vmcnt(8)')
    stamp(2)
    a('v_add_u32 v9, 0x%x, v9' % TAGC)
    for k in range(4):
        a('v_lshlrev_b32 v%d, 16, v%d' % (90 + 2 * k, 4 + k))
        a('v_and_b32 v%d, 0xffff0000, v%d' % (91 + 2 * k, 4 + k))
    a('v_lshlrev_b32 v98, 16, v8')
    a('v_and_b32 v99, 0xffff0000, v8')
    a('v_add_f32 v100, v90, v91'); a('v_add_f32 v101, v92, v93'); a('v_add_f32 v102, v94, v95'); a('v_add_f32 v103, v96, v97'); a('v_add_f32 v104, v98, v99')
    a('v_add_f32 v100, v100, v101'); a('v_add_f32 v102, v102, v103'); a('v_add_f32 v100, v100, v104'); a('v_add_f32 v100, v100, v102')
    allreduce('v_add_f32', 100, 101)
    a('v_mul_f32 v100, 0x%x, v100' % INV640)
    for k in range(10):
        a('v_sub_f32 v%d, v%d, v100' % (90 + k, 90 + k))
    a('v_mul_f32 v101, v90, v90')
    a('v_mul_f32 v102, v91, v91')
    for k in range(2, 10, 2):
        a('v_fmac_f32 v101, v%d, v%d' % (90 + k, 90 + k))
        a('v_fmac_f32 v102, v%d, v%d' % (91 + k, 91 + k))
    a('v_add_f32 v101, v101, v102')
    allreduce('v_add_f32', 101, 102)
    a('v_mul_f32 v101, 0x%x, v101' % INV640)
    a('v_cvt_pk_bf16_f32 v102, v100, v101')
    a('v_lshlrev_b32 v100, 16, v102')
    a('v_and_b32 v101, 0xffff0000, v102')
    a('v_add_f32 v101, 0x%x, v101' % EPS)
    a('v_cvt_pk_bf16_f32 v101, v101, v101')
    a('v_and_b32 v101, 0xffff0000, v101')
    a('v_sqrt_f32 v101, v101')
    a('v_cvt_pk_bf16_f32 v101, v101, v101')
    a('v_and_b32 v101, 0xffff0000, v101')
    a('v_rcp_f32 v101, v101')
    for k in range(4):
        a('v_lshlrev_b32 v%d, 16, v%d' % (90 + 2 * k, 10 + k))
        a('v_and_b32 v%d, 0xffff0000, v%d' % (91 + 2 * k, 10 + k))
    for k in range(8): a('v_sub_f32 v%d, v%d, v100' % (90 + k, 90 + k))
    for k in range(8): a('v_cvt_pk_bf16_f32 v%d, v%d, v%d' % (90 + k, 90 + k, 90 + k))
    for k in range(8): a('v_and_b32 v%d, 0xffff0000, v%d' % (90 + k, 90 + k))
    for k in range(8): a('v_mul_f32 v%d, v%d, v101' % (90 + k, 90 + k))
    for k in range(8): a('v_cvt_pk_bf16_f32 v%d, v%d, v%d' % (90 + k, 90 + k, 90 + k))
    for k in range(8):
        for r in range(4):
            a('v_and_b32 v%d, v%d, v%d' % (48 + 4 * k + r, 90 + k, 80 + r))
    stamp(3)
    for i in range(8):
        a('s_waitcnt vmcnt(%d)' % (7 - i))
        a('v_mfma_f32_16x16x32_bf16 v[84:87], v[%d:%d], v[%d:%d], %s' % (48 + 4 * i, 51 + 4 * i, 16 + 4 * i, 19 + 4 * i, '0' if i == 0 else 'v[84:87]'))
    stamp(4)
    a('v_lshlrev_b32 v90, 5, v1')
    a('v_and_b32 v91, 16, v0')
    a('s_lshl_b32 s52, s27, 9')
    a('v_add3_u32 v90, v90, v91, s52')
    a('s_mov_b64 exec, s[56:57]')
    a('ds_write_b128 v90, v[84:87] offset:%d' % APART)
    a('s_mov_b64 exec, -1')
    set_flag(FLAG_A, 91, 92)
    a('s_cmp_lg_u32 s27, 0')
    a('s_cbranch_scc1 L_A_poll')
    a('v_mov_b32 v89, 0')
    lds_wait(FLAG_A, 92, 89)
    a('v_lshlrev_b32 v90, 3, v0')
    for w in range(4):
        a('ds_read_b64 v[%d:%d], v90 offset:%d' % (92 + 2 * w, 93 + 2 * w, APART + 512 * w))
    a('s_waitcnt lgkmcnt(0)')
    a('v_add_f32 v92, v92, v94'); a('v_add_f32 v93, v93, v95')
    a('v_add_f32 v96, v96, v98'); a('v_add_f32 v97, v97, v99')
    a('v_add_f32 v92, v92, v96'); a('v_add_f32 v93, v93, v97')
    a('s_cmp_lt_u32 s29, 5')
    a('s_cbranch_scc1 L_A_pub')
    a('v_mov_b32 v96, v92'); a('v_mov_b32 v97, v93')
    a('v_permlane32_swap_b32 v92, v96')
    a('v_permlane32_swap_b32 v93, v97')
    a('v_add_f32 v92, v92, v96'); a('v_add_f32 v93, v93, v97')
    a('s_mov_b32 exec_lo, -1'); a('s_mov_b32 exec_hi, 0')
    a.label('L_A_pub')
    a('v_mov_b32 v94, 0')
    a('v_mov_b32 v95, v9')
    a('v_add_u32 v90, s60, v3')
    a('buffer_store_dwordx4 v[92:95], v90, s[32:35], 0 offen %s' % st_flags)
    a('s_mov_b64 exec, -1')
    stamp(5)
    a('s_branch L_A_poll')
    a.label('L_A_none')
    a('v_mov_b32 v89, 0')
    a('v_lshlrev_b32 v15, 2, v0')
    a('ds_write_b32 v15, v89')
    a('s_waitcnt lgkmcnt(0)')
    a('s_barrier')
    a('s_waitcnt vmcnt(0)')
    a('v_add_u32 v9, 0x%x, v9' % TAGC)
    a.label('L_A_poll')
    a('s_mul_i32 s52, s28, 5')
    a('s_lshl_b32 s52, s52, 10')
    a('s_lshl_b32 s53, s27, 8')
    a('s_add_u32 s52, s52, s53')
    a('s_add_u32 s52, s52, %d' % X1Q)
    a('v_lshlrev_b32 v90, 4, v1')
    a('v_add_u32 v91, s52, v90')
    a('v_lshlrev_b32 v90, 10, v2')
    a('v_add_u32 v90, v91, v90')
    a('v_add_u32 v91, 4096, v91')
    a('s_mov_b32 s58, %d' % SPIN_MEM)
    a.label('L_A_pl')
    a('buffer_load_dwordx4 v[92:95], v90, s[32:35], 0 offen %s' % ld_flags)
    a('buffer_load_dwordx4 v[96:99], v91, s[32:35], 0 offen %s' % ld_flags)
    a('s_waitcnt vmcnt(0)')
    a('v_cmp_ne_u32 vcc, v95, v9')
    a('v_cmp_ne_u32 s[52:53], v99, v9')
    a('s_or_b64 vcc, vcc, s[52:53]')
    a('s_cbranch_vccz L_A_pd')
    a('s_sub_u32 s58, s58, 1')
    a('s_cbranch_scc1 L_A_pd')
    if pollsleep: a('s_sleep %d' % pollsleep)
    a('s_branch L_A_pl')
    a.label('L_A_pd')
    stamp(6)
    a('v_permlane32_swap_b32 v92, v93')
    a('v_add_f32 v92, v92, v93')
    a('v_mov_b32 v93, v92')
    a('v_permlane16_swap_b32 v92, v93')
    a('v_add_f32 v92, v92, v93')
    a('v_cmp_gt_u32 vcc, 32, v0')
    a('v_cndmask_b32 v96, v97, v96, vcc')
    a('v_add_f32 v92, v92, v96')
    a('v_cvt_pk_bf16_f32 v92, v92, v92')
    a('v_lshrrev_b32 v93, 5, v0')
    a('v_lshl_add_u32 v93, v1, 1, v93')
    a('s_lshl_b32 s52, s27, 5')
    a('v_add_u32 v93, s52, v93')
    a('v_lshlrev_b32 v93, 1, v93')
    a('ds_write_b16 v93, v92 offset:%d' % QL)
    set_flag(FLAG_Q, 91, 94)
    stamp(7)
    write_stamps(0)
    a('s_endpgm')

    a.label('L_B')
    a('s_setprio %d' % prio[1])
    a('s_lshl_b32 s52, s28, 21')
    a('s_lshl_b32 s53, s29, 16')
    a('s_add_u32 s52, s52, s53')
    a('s_add_u32 s52, s52, %d' % (6144 * 256))
    a('s_add_u32 s44, s6, s52')
    a('s_addc_u32 s45, s7, 0')
    a('s_mov_b32 s46, 65536')
    a('s_mov_b32 s47, 0x20000')
    a('s_lshl_b32 s52, s27, 10')
    a('v_add_u32 v4, s52, v3')
    a('s_barrier')
    a('s_mov_b32 s52, s59')
    for i in range(16):
        a('buffer_load_dwordx4 v[%d:%d], v4, s[44:47], s52 offen %s' % (16 + 4 * i, 19 + 4 * i, ntK))
        if i < 15:
            a('s_add_u32 s52, s52, 4096')
            a('s_and_b32 s52, s52, 0xffff')
    stamp(1)
    a('v_mov_b32 v5, 0')
    lds_wait(FLAG_Q, 84, 5)
    stamp(2)
    a('v_lshlrev_b32 v6, 4, v1')
    a('ds_read_b128 v[80:83], v6 offset:%d' % QL)
    a('s_waitcnt lgkmcnt(0)')
    for i in range(16):
        a('s_waitcnt vmcnt(%d)' % (15 - i))
        k = 16 + 4 * i
        a('v_dot2_f32_bf16 v%d, v%d, v80, 0' % (84 + i, k))
        for r in range(1, 4):
            a('v_dot2_f32_bf16 v%d, v%d, v%d, v%d' % (84 + i, k + r, 80 + r, 84 + i))
    stamp(3)
    for i in range(8):
        a('v_add_f32_dpp v%d, v%d, v%d row_ror:8 row_mask:0xf bank_mask:0x3' % (84 + i, 84 + i, 84 + i))
        a('v_add_f32_dpp v%d, v%d, v%d row_ror:8 row_mask:0xf bank_mask:0xc' % (84 + i, 92 + i, 92 + i))
    for i in range(4):
        a('v_add_f32_dpp v%d, v%d, v%d row_half_mirror row_mask:0xf bank_mask:0x5' % (84 + i, 84 + i, 84 + i))
        a('v_add_f32_dpp v%d, v%d, v%d row_half_mirror row_mask:0xf bank_mask:0xa' % (84 + i, 88 + i, 88 + i))
    for i in range(4):
        a('v_add_f32_dpp v%d, v%d, v%d quad_perm:[2,3,0,1] row_mask:0xf bank_mask:0xf' % (88 + i, 84 + i, 84 + i))
    a('v_and_b32 v6, 2, v0')
    a('v_cmp_eq_u32 vcc, 0, v6')
    a('v_cndmask_b32 v84, v90, v88, vcc')
    a('v_cndmask_b32 v85, v91, v89, vcc')
    a('v_and_b32 v6, 1, v0')
    a('v_add_f32_dpp v88, v84, v84 quad_perm:[1,0,3,2] row_mask:0xf bank_mask:0xf')
    a('v_add_f32_dpp v89, v85, v85 quad_perm:[1,0,3,2] row_mask:0xf bank_mask:0xf')
    a('v_cmp_eq_u32 vcc, 0, v6')
    a('v_cndmask_b32 v84, v89, v88, vcc')
    a('v_cvt_pk_bf16_f32 v84, v84, v84')
    a('v_and_b32 v84, 0xffff0000, v84')
    a('v_mul_f32 v84, 0x%x, v84' % SCALE)
    a('v_cvt_pk_bf16_f32 v84, v84, v84')
    a('v_and_b32 v84, 0xffff0000, v84')
    a('v_mov_b32 v85, v84')
    allreduce('v_max_f32', 85, 86)
    a('v_sub_f32 v86, v84, v85')
    a('v_mul_f32 v86, 0x%x, v86' % LOG2E)
    a('v_exp_f32 v86, v86')
    a('v_cvt_pk_bf16_f32 v87, v86, v86')
    a('s_lshl_b32 s52, s27, 8')
    a('v_lshlrev_b32 v6, 2, v0')
    a('v_add_u32 v6, s52, v6')
    a('ds_write_b32 v6, v87 offset:%d' % PL)
    allreduce('v_add_f32', 86, 88)
    a('v_mov_b32 v88, v85')
    a('v_mov_b32 v89, v86')
    a('s_lshl_b32 s52, s27, 3')
    a('v_mov_b32 v6, s52')
    a('ds_write_b64 v6, v[88:89] offset:%d' % ML)
    set_flag(FLAG_P, 6, 7)
    stamp(4)
    write_stamps(1)
    a('s_endpgm')

    a.label('L_CD')
    a('s_setprio %d' % prio[2])
    a('buffer_load_dword v9, off, s[32:35], 0 sc1')
    srd(36, 's4', 's5', 1280)
    a('s_lshl_b32 s52, s2, 3')
    a('v_and_b32 v7, 1, v0')
    a('v_lshlrev_b32 v7, 2, v7')
    a('v_add_u32 v10, s52, v7')
    a('buffer_load_dword v8, v10, s[36:39], 0 offen')
    a('s_lshl_b32 s52, s28, 21')
    a('s_lshl_b32 s53, s29, 16')
    a('s_add_u32 s52, s52, s53')
    a('s_add_u32 s52, s52, %d' % (6144 * 256))
    a('s_add_u32 s44, s8, s52')
    a('s_addc_u32 s45, s9, 0')
    a('s_mov_b32 s46, 65536')
    a('s_mov_b32 s47, 0x20000')
    a('s_lshl_b32 s52, s27, 10')
    a('v_add_u32 v4, s52, v3')
    a('s_cmp_lt_u32 s29, 5')
    a('s_cbranch_scc0 L_C_ffn')
    a('s_mul_i32 s52, s28, %d' % (128 * 1280))
    a('s_lshl_b32 s53, s29, 8')
    a('s_add_u32 s52, s52, s53')
    a('s_add_u32 s40, s12, s52')
    a('s_addc_u32 s41, s13, 0')
    a('s_sub_u32 s42, 5242880, s52')
    a('s_mov_b32 s43, 0x20000')
    a('s_mul_i32 s52, s27, %d' % (32 * 1280))
    a('v_mul_u32_u24 v5, %d, v2' % (8 * 1280))
    a('v_lshlrev_b32 v6, 4, v1')
    a('v_add3_u32 v5, v5, v6, s52')
    a('v_add_u32 v6, 5120, v5')
    a('s_branch L_C_go')
    a.label('L_C_ffn')
    a('s_min_u32 s54, s28, 26')
    a('s_mul_i32 s52, s54, %d' % (64 * 1280))
    a('s_lshl_b32 s53, s30, 9')
    a('s_add_u32 s52, s52, s53')
    a('s_add_u32 s40, s18, s52')
    a('s_addc_u32 s41, s19, 0')
    a('s_sub_u32 s42, 2211840, s52')
    a('s_mov_b32 s43, 0x20000')
    a('s_mul_i32 s52, s27, %d' % (16 * 1280))
    a('v_mul_u32_u24 v5, %d, v2' % (4 * 1280))
    a('v_lshlrev_b32 v6, 4, v1')
    a('v_add3_u32 v5, v5, v6, s52')
    a('v_add_u32 v6, 256, v5')
    a('s_cmp_eq_u32 s30, 2')
    a('s_cbranch_scc0 L_C_f1')
    a('v_mov_b32 v6, 0x7ff00000')
    a.label('L_C_f1')
    a('s_cmp_ge_u32 s28, 27')
    a('s_cbranch_scc0 L_C_go')
    a('v_mov_b32 v5, 0x7ff00000')
    a('v_mov_b32 v6, 0x7ff00000')
    a.label('L_C_go')
    a('s_barrier')
    a('s_mov_b32 s52, s59')
    for i in range(16):
        a('buffer_load_dwordx4 v[%d:%d], v4, s[44:47], s52 offen %s' % (16 + 4 * i, 19 + 4 * i, ntV))
        if i < 15:
            a('s_add_u32 s52, s52, 4096')
            a('s_and_b32 s52, s52, 0xffff')
    for i in range(8):
        a('buffer_load_dwordx4 v[%d:%d], v%d, s[40:43], 0 offen offset:%d %s' % (80 + 4 * i, 83 + 4 * i, 5 if i < 4 else 6, (i % 4) * 1280, ntD))
    stamp(1)
    masks(128, 148)
    a('v_mov_b32 v11, 0')
    lds_wait(FLAG_P, 148, 11)
    stamp(2)
    a('s_lshl_b32 s52, s27, 8')
    a('v_lshlrev_b32 v12, 6, v2')
    a('v_add_u32 v12, s52, v12')
    for k in range(4):
        a('ds_read_b128 v[%d:%d], v12 offset:%d' % (112 + 4 * k, 115 + 4 * k, PL + 16 * k))
    a('ds_read_b128 v[148:151], v11 offset:%d' % ML)
    a('ds_read_b128 v[152:155], v11 offset:%d' % (ML + 16))
    a('s_waitcnt lgkmcnt(0)')
    a('v_max_f32 v156, v148, v150'); a('v_max_f32 v157, v152, v154'); a('v_max_f32 v156, v156, v157')
    for k in range(4):
        a('v_sub_f32 v%d, v%d, v156' % (148 + 2 * k, 148 + 2 * k))
    for k in range(4):
        a('v_mul_f32 v%d, 0x%x, v%d' % (148 + 2 * k, LOG2E, 148 + 2 * k))
    for k in range(4):
        a('v_exp_f32 v%d, v%d' % (148 + 2 * k, 148 + 2 * k))
    a('v_mul_f32 v157, v148, v149')
    a('v_fmac_f32 v157, v150, v151'); a('v_fmac_f32 v157, v152, v153'); a('v_fmac_f32 v157, v154, v155')
    a('v_mov_b32 v158, v148')
    for k in range(1, 4):
        a('s_cmp_eq_u32 s27, %d' % k)
        a('s_cselect_b64 vcc, -1, 0')
        a('v_cndmask_b32 v158, v158, v%d, vcc' % (148 + 2 * k))
    def aop(i):
        b = 132 + 4 * (i & 1)
        for r in range(4):
            a('v_and_b32 v%d, v%d, v%d' % (b + r, 112 + i, 128 + r))
    aop(0)
    for i in range(16):
        if i < 15: aop(i + 1)
        a('s_waitcnt vmcnt(%d)' % (8 + 15 - i))
        b = 132 + 4 * (i & 1)
        a('v_mfma_f32_16x16x32_bf16 v[140:143], v[%d:%d], v[%d:%d], %s' % (b, b + 3, 16 + 4 * i, 19 + 4 * i, '0' if i == 0 else 'v[140:143]'))
    stamp(3)
    a('v_add_u32 v9, 0x%x, v9' % TAGC)
    a('v_lshlrev_b32 v12, 5, v1')
    a('v_and_b32 v13, 16, v0')
    a('s_lshl_b32 s52, s27, 9')
    a('v_add3_u32 v12, v12, v13, s52')
    for r in range(4):
        a('v_mul_f32 v%d, v%d, v158' % (140 + r, 140 + r))
    a('s_mov_b32 exec_lo, -1'); a('s_mov_b32 exec_hi, 0')
    a('ds_write_b128 v12, v[140:143] offset:%d' % PVP)
    a('s_mov_b64 exec, -1')
    a('s_waitcnt lgkmcnt(0)')
    a('s_barrier')
    a('s_cmp_lg_u32 s27, 0')
    a('s_cbranch_scc1 L_C_x2done')
    a('v_and_b32 v12, 31, v0')
    a('v_lshlrev_b32 v12, 4, v12')
    for w in range(4):
        a('ds_read_b128 v[%d:%d], v12 offset:%d' % (16 + 4 * w, 19 + 4 * w, PVP + 512 * w))
    a('s_lshl_b32 s52, s28, 3')
    a('s_add_u32 s52, s52, s29')
    a('s_lshl_b32 s52, s52, 10')
    a('s_add_u32 s52, s52, %d' % X2)
    a('v_add_u32 v13, s52, v3')
    a('v_cmp_gt_u32 vcc, 32, v0')
    a('s_waitcnt lgkmcnt(0)')
    for r in range(4):
        a('v_add_f32 v%d, v%d, v%d' % (16 + r, 16 + r, 20 + r))
        a('v_add_f32 v%d, v%d, v%d' % (24 + r, 24 + r, 28 + r))
    for r in range(4):
        a('v_add_f32 v%d, v%d, v%d' % (16 + r, 16 + r, 24 + r))
    a('v_cndmask_b32 v20, v19, v16, vcc')
    a('v_cndmask_b32 v21, v156, v17, vcc')
    a('v_cndmask_b32 v22, v157, v18, vcc')
    a('v_mov_b32 v23, v9')
    a('buffer_store_dwordx4 v[20:23], v13, s[32:35], 0 offen %s' % st_flags)
    a.label('L_C_x2done')
    stamp(4)
    a('s_cmp_lt_u32 s29, 5')
    a('s_cbranch_scc0 L_D_ffn')
    a('v_and_b32 v12, 7, v0')
    a('v_lshlrev_b32 v12, 10, v12')
    a('v_lshrrev_b32 v13, 3, v0')
    a('v_lshlrev_b32 v13, 4, v13')
    a('s_lshl_b32 s52, s28, 13')
    a('s_lshl_b32 s53, s27, 7')
    a('s_add_u32 s52, s52, s53')
    a('s_add_u32 s52, s52, %d' % X2)
    a('v_add3_u32 v12, v12, v13, s52')
    a('s_mov_b32 s58, %d' % SPIN_MEM)
    a.label('L_D_pl')
    a('buffer_load_dwordx4 v[16:19], v12, s[32:35], 0 offen %s' % ld_flags)
    a('buffer_load_dwordx4 v[20:23], v12, s[32:35], 0 offen offset:512 %s' % ld_flags)
    a('s_waitcnt vmcnt(0)')
    a('v_cmp_ne_u32 vcc, v19, v9')
    a('v_cmp_ne_u32 s[52:53], v23, v9')
    a('s_or_b64 vcc, vcc, s[52:53]')
    a('s_cbranch_vccz L_D_pd')
    a('s_sub_u32 s58, s58, 1')
    a('s_cbranch_scc1 L_D_pd')
    if pollsleep: a('s_sleep %d' % pollsleep)
    a('s_branch L_D_pl')
    a.label('L_D_pd')
    stamp(5)
    def red8(op, v):
        return ['%s_dpp v%d, v%d, v%d row_half_mirror row_mask:0xf bank_mask:0xf' % (op, v, v, v),
                '%s_dpp v%d, v%d, v%d quad_perm:[1,0,3,2] row_mask:0xf bank_mask:0xf' % (op, v, v, v),
                '%s_dpp v%d, v%d, v%d quad_perm:[2,3,0,1] row_mask:0xf bank_mask:0xf' % (op, v, v, v)]
    a('v_mov_b32 v24, v21')
    for s_ in red8('v_max_f32', 24): a(s_)
    a('v_sub_f32 v21, v21, v24')
    a('v_mul_f32 v21, 0x%x, v21' % LOG2E)
    a('v_exp_f32 v21, v21')
    vals = (22, 16, 17, 18, 20)
    for v in vals: a('v_mul_f32 v%d, v%d, v21' % (v, v))
    for st in range(3):
        for v in vals: a(red8('v_add_f32', v)[st])
    a('v_rcp_f32 v22, v22')
    for v in vals[1:]: a('v_mul_f32 v%d, v%d, v22' % (v, v))
    for v in vals[1:]: a('v_cvt_pk_bf16_f32 v%d, v%d, v%d' % (v, v, v))
    ov = (16, 17, 18, 20)
    for i in range(8):
        for r in range(4):
            if i < 4: a('v_and_b32 v%d, v%d, v%d' % (24 + 4 * i + r, ov[i], 128 + r))
            else: a('v_and_b32_dpp v%d, v%d, v%d row_ror:8 row_mask:0xf bank_mask:0xf' % (24 + 4 * i + r, ov[i - 4], 128 + r))
    for i in range(8):
        a('v_mfma_f32_16x16x32_bf16 v[140:143], v[%d:%d], v[%d:%d], %s' % (24 + 4 * i, 27 + 4 * i, 80 + 4 * i, 83 + 4 * i, '0' if i == 0 else 'v[140:143]'))
    a('s_lshl_b32 s60, s29, 5')
    a('s_add_u32 s60, s60, s28')
    a('s_lshl_b32 s60, s60, 10')
    a('s_add_u32 s60, s60, %d' % X3A)
    a('s_mov_b32 s61, 1')
    a('s_branch L_D_red')
    a.label('L_D_ffn')
    a('s_cmp_ge_u32 s28, 27')
    a('s_cbranch_scc1 L_final')
    a('v_and_b32 v12, 3, v0')
    a('v_min_u32 v13, 2, v12')
    a('v_lshlrev_b32 v13, 10, v13')
    a('v_lshlrev_b32 v14, 5, v2')
    a('s_mul_i32 s52, s28, 3072')
    a('s_lshl_b32 s53, s27, 7')
    a('s_add_u32 s52, s52, s53')
    a('s_add_u32 s52, s52, %d' % X1H)
    a('v_add3_u32 v13, v13, v14, s52')
    a('s_mov_b32 s58, %d' % SPIN_MEM)
    a.label('L_F_pl')
    a('buffer_load_dwordx4 v[16:19], v13, s[32:35], 0 offen %s' % ld_flags)
    a('buffer_load_dwordx4 v[20:23], v13, s[32:35], 0 offen offset:16 %s' % ld_flags)
    a('s_waitcnt vmcnt(0)')
    a('v_cmp_ne_u32 vcc, v19, v9')
    a('v_cmp_ne_u32 s[52:53], v23, v9')
    a('s_or_b64 vcc, vcc, s[52:53]')
    a('s_cbranch_vccz L_F_pd')
    a('s_sub_u32 s58, s58, 1')
    a('s_cbranch_scc1 L_F_pd')
    if pollsleep: a('s_sleep %d' % pollsleep)
    a('s_branch L_F_pl')
    a.label('L_F_pd')
    stamp(5)
    a('v_cmp_gt_u32 vcc, 3, v12')
    hv = (16, 17, 20, 21)
    for v in hv: a('v_cndmask_b32 v%d, 0, v%d, vcc' % (v, v))
    for v in hv: a('v_add_f32_dpp v%d, v%d, v%d quad_perm:[1,0,3,2] row_mask:0xf bank_mask:0xf' % (v, v, v))
    for v in hv: a('v_add_f32_dpp v%d, v%d, v%d quad_perm:[2,3,0,1] row_mask:0xf bank_mask:0xf' % (v, v, v))
    for v in hv: a('v_cvt_pk_bf16_f32 v%d, v%d, v%d' % (v, v, v))
    for v in hv: a('v_and_b32 v%d, 0xffff0000, v%d' % (v, v))
    for k, v in enumerate(hv): a('v_mul_f32 v%d, 0x%x, v%d' % (24 + k, LOG2E ^ 0x80000000, v))
    for k in range(4): a('v_exp_f32 v%d, v%d' % (24 + k, 24 + k))
    for k in range(4): a('v_add_f32 v%d, 1.0, v%d' % (24 + k, 24 + k))
    for k in range(4): a('v_rcp_f32 v%d, v%d' % (24 + k, 24 + k))
    for k, v in enumerate(hv): a('v_mul_f32 v%d, v%d, v%d' % (v, v, 24 + k))
    for v in hv: a('v_cvt_pk_bf16_f32 v%d, v%d, v%d' % (v, v, v))
    for i in range(4):
        for r in range(4):
            a('v_and_b32 v%d, v%d, v%d' % (24 + 4 * i + r, hv[i], 128 + r))
    for i in range(4):
        a('v_mfma_f32_16x16x32_bf16 v[140:143], v[%d:%d], v[%d:%d], %s' % (24 + 4 * i, 27 + 4 * i, 80 + 4 * i, 83 + 4 * i, '0' if i == 0 else 'v[140:143]'))
        a('v_mfma_f32_16x16x32_bf16 v[144:147], v[%d:%d], v[%d:%d], %s' % (24 + 4 * i, 27 + 4 * i, 96 + 4 * i, 99 + 4 * i, '0' if i == 0 else 'v[144:147]'))
    a('s_lshl_b32 s60, s30, 6')
    a('s_add_u32 s60, s60, s28')
    a('s_lshl_b32 s60, s60, 10')
    a('s_add_u32 s60, s60, %d' % X3F)
    a('s_cmp_eq_u32 s30, 2')
    a('s_cselect_b32 s61, 1, 2')
    a.label('L_D_red')
    a('v_lshlrev_b32 v12, 5, v1')
    a('v_and_b32 v13, 16, v0')
    a('s_lshl_b32 s52, s27, 10')
    a('v_add3_u32 v12, v12, v13, s52')
    a('s_nop 7')
    a('s_mov_b32 exec_lo, -1'); a('s_mov_b32 exec_hi, 0')
    a('ds_write_b128 v12, v[140:143] offset:%d' % FIN)
    a('s_cmp_eq_u32 s61, 2')
    a('s_cbranch_scc0 L_D_w1')
    a('ds_write_b128 v12, v[144:147] offset:%d' % (FIN + 512))
    a.label('L_D_w1')
    a('s_mov_b64 exec, -1')
    a('s_waitcnt lgkmcnt(0)')
    a('s_barrier')
    stamp(6)
    a('s_and_b32 s52, s27, 1')
    a('s_cmp_lg_u32 s52, 0')
    a('s_cbranch_scc1 L_final')
    a('s_lshr_b32 s52, s27, 1')
    a('s_cmp_ge_u32 s52, s61')
    a('s_cbranch_scc1 L_final')
    a('s_lshl_b32 s53, s52, 9')
    a('v_lshlrev_b32 v12, 3, v0')
    a('v_add_u32 v12, s53, v12')
    for w in range(4):
        a('ds_read_b64 v[%d:%d], v12 offset:%d' % (16 + 2 * w, 17 + 2 * w, FIN + 1024 * w))
    a('s_lshl_b32 s53, s52, 15')
    a('s_add_u32 s53, s53, s60')
    a('v_add_u32 v13, s53, v3')
    a('s_waitcnt lgkmcnt(0)')
    a('v_add_f32 v16, v16, v18'); a('v_add_f32 v17, v17, v19')
    a('v_add_f32 v20, v20, v22'); a('v_add_f32 v21, v21, v23')
    a('v_add_f32 v16, v16, v20'); a('v_add_f32 v17, v17, v21')
    a('v_mov_b32 v18, 0')
    a('v_mov_b32 v19, v9')
    a('buffer_store_dwordx4 v[16:19], v13, s[32:35], 0 offen %s' % st_flags)
    stamp(7)
    a.label('L_final')
    a('s_cmp_eq_u32 s27, 1')
    a('s_cbranch_scc0 L_CD_end')
    a('s_cmp_lt_u32 s2, 160')
    a('s_cbranch_scc0 L_CD_end')
    a('s_lshr_b32 s52, s2, 5')
    a('s_and_b32 s53, s2, 31')
    a('s_lshl_b32 s52, s52, 15')
    a('s_lshl_b32 s53, s53, 5')
    a('s_add_u32 s52, s52, s53')
    a('v_lshrrev_b32 v12, 1, v0')
    a('v_and_b32 v13, 1, v0')
    a('v_lshlrev_b32 v13, 4, v13')
    a('v_add_u32 v13, s52, v13')
    a('v_min_u32 v14, 26, v12')
    a('v_lshlrev_b32 v14, 10, v14')
    a('v_lshlrev_b32 v15, 10, v12')
    a('v_add_u32 v14, v14, v13')
    a('v_add_u32 v15, v15, v13')
    a('v_add_u32 v14, 0x%x, v14' % X3F)
    a('v_add_u32 v15, 0x%x, v15' % X3A)
    a('s_mov_b32 s58, %d' % SPIN_MEM)
    a.label('L_R_pl')
    a('buffer_load_dwordx4 v[16:19], v15, s[32:35], 0 offen %s' % ld_flags)
    a('buffer_load_dwordx4 v[20:23], v14, s[32:35], 0 offen %s' % ld_flags)
    a('s_waitcnt vmcnt(0)')
    a('v_cmp_ne_u32 vcc, v19, v9')
    a('v_cmp_ne_u32 s[52:53], v23, v9')
    a('s_or_b64 vcc, vcc, s[52:53]')
    a('s_cbranch_vccz L_R_pd')
    a('s_sub_u32 s58, s58, 1')
    a('s_cbranch_scc1 L_R_pd')
    if pollsleep: a('s_sleep %d' % pollsleep)
    a('s_branch L_R_pl')
    a.label('L_R_pd')
    stamp(8)
    a('v_cmp_gt_u32 vcc, 27, v12')
    a('v_cndmask_b32 v20, 0, v20, vcc')
    a('v_cndmask_b32 v21, 0, v21, vcc')
    fv = (16, 17, 20, 21)
    for r in (2, 4, 8):
        for v in fv: a('v_add_f32_dpp v%d, v%d, v%d row_ror:%d row_mask:0xf bank_mask:0xf' % (v, v, v, r))
    for k, v in enumerate(fv): a('v_mov_b32 v%d, v%d' % (24 + k, v))
    for k, v in enumerate(fv): a('v_permlane16_swap_b32 v%d, v%d' % (v, 24 + k))
    for k, v in enumerate(fv): a('v_add_f32 v%d, v%d, v%d' % (v, v, 24 + k))
    for k, v in enumerate(fv): a('v_mov_b32 v%d, v%d' % (24 + k, v))
    for k, v in enumerate(fv): a('v_permlane32_swap_b32 v%d, v%d' % (v, 24 + k))
    for k, v in enumerate(fv): a('v_add_f32 v%d, v%d, v%d' % (v, v, 24 + k))
    a('v_cvt_pk_bf16_f32 v16, v16, v17')
    a('v_cvt_pk_bf16_f32 v20, v20, v21')
    a('v_lshlrev_b32 v24, 16, v8'); a('v_and_b32 v25, 0xffff0000, v8')
    a('v_lshlrev_b32 v26, 16, v16'); a('v_and_b32 v27, 0xffff0000, v16')
    a('v_add_f32 v24, v24, v26'); a('v_add_f32 v25, v25, v27')
    a('v_cvt_pk_bf16_f32 v24, v24, v25')
    a('v_lshlrev_b32 v26, 16, v20'); a('v_and_b32 v27, 0xffff0000, v20')
    a('v_lshlrev_b32 v28, 16, v24'); a('v_and_b32 v29, 0xffff0000, v24')
    a('v_add_f32 v26, v26, v28'); a('v_add_f32 v27, v27, v29')
    a('v_cvt_pk_bf16_f32 v26, v26, v27')
    srd(48, 's20', 's21', 1280)
    a('s_mov_b64 exec, 3')
    a('buffer_store_dword v26, v10, s[48:51], 0 offen')
    a('s_cmp_eq_u32 s2, 0')
    a('s_cbranch_scc0 L_CD_end')
    a('s_mov_b64 exec, 1')
    a('buffer_store_dword v9, off, s[32:35], 0 sc1')
    a.label('L_CD_end')
    stamp(9)
    write_stamps(2)
    a.label('L_end')
    a('s_endpgm')
    lines = hazard.fix(a.lines)
    return wrap('\n'.join(lines) + '\n', 256, 768, LDS_BYTES, 160, sgpr=100)

if __name__ == '__main__':
    out = sys.argv[1] if len(sys.argv) > 1 else 'k.s'
    kw = {}
    for arg in sys.argv[2:]:
        k, v = arg.split('=')
        kw[k] = eval(v)
    open(out, 'w').write(gen(**kw))
```

```python
import sys
from asmlib import *
import hazard

FLAG_A, FLAG_Q, FLAG_P = 0, 16, 32
QL, ML, PL, APART, PVP, FIN = 64, 320, 512, 2048, 4096, 6144
LDS_BYTES = 10240
X1Q, X1H, X2, X3A, X3F, STAMP = 0x1000, 0x30000, 0x50000, 0x90000, 0xC0000, 0x200000
BOFF = 0x100000
WS_RECORDS = 0x400000
TAGC = 0x9E3779B1
LOG2E = 0x3FB8AA3B
SCALE = 0x3DB504F3
INV640 = 0x3ACCCCCD
EPS = 0x3727C5AC
SPIN_LDS = 1 << 20
SPIN_MEM = 1 << 16

def gen(stamps=False, ntA='nt', ntK='nt', ntV='nt', ntD='nt', prio=(3, 2, 0), rot=True, st_flags='sc1', ld_flags='sc1', pollsleep=0, dbgtime=False, dbgwg=0, streamonly=False, rotf=0, x1st=None, x2st=None, x3st=None, x1ld=None, x2ld=None, x3ld=None, dual=True, nf1=6, nf2=16, nfh=4):
    x1st = st_flags if x1st is None else x1st; x2st = st_flags if x2st is None else x2st; x3st = st_flags if x3st is None else x3st
    x1ld = ld_flags if x1ld is None else x1ld; x2ld = ld_flags if x2ld is None else x2ld; x3ld = ld_flags if x3ld is None else x3ld
    a = Asm()
    stamp_idx = [0]
    if dbgtime: stamps = True
    def stamp(k):
        if stamps: a('s_memrealtime s[%d:%d]' % (64 + 2 * k, 65 + 2 * k))
    def srd(r, lo, hi, rec):
        a('s_mov_b32 s%d, %s' % (r, lo)); a('s_mov_b32 s%d, %s' % (r + 1, hi))
        a('s_mov_b32 s%d, %s' % (r + 2, rec)); a('s_mov_b32 s%d, 0x20000' % (r + 3))
    def write_dbg(role):
        slots = {0: {0: 0, 2: 1, 4: 2, 5: 3, 6: 4}, 1: {1: 5, 2: 6, 3: 7, 4: 8}, 2: {1: 9, 2: 10, 3: 11, 5: 12, 6: 13, 8: 14, 9: 15}}[role]
        L = a.newlabel('L_nodbg')
        a('s_cmp_eq_u32 s2, %d' % dbgwg)
        a('s_cbranch_scc0 %s' % L)
        a('s_cmp_eq_u32 s27, %d' % (1 if role == 2 else 0))
        a('s_cbranch_scc0 %s' % L)
        a('s_waitcnt lgkmcnt(0)')
        a('s_mov_b64 exec, -1')
        a('v_mov_b32 v1, 0')
        mask = 0
        for k, sl in slots.items():
            a('v_writelane_b32 v1, s%d, %d' % (64 + 2 * k, sl)); mask |= 1 << sl
        srd(48, 's22', 's23', 256)
        a('v_lshlrev_b32 v2, 2, v0')
        a('s_mov_b64 exec, 0x%x' % mask)
        a('buffer_store_dword v1, v2, s[48:51], 0 offen')
        a('s_waitcnt vmcnt(0)')
        a.label(L)
    def write_stamps(role=0):
        if not stamps: return
        if dbgtime: return write_dbg(role)
        a('s_waitcnt lgkmcnt(0)')
        a('s_mov_b64 exec, -1')
        a('v_mov_b32 v1, 0')
        for k in range(16):
            a('v_writelane_b32 v1, s%d, %d' % (64 + 2 * k, k))
        a('s_lshl_b32 s52, s2, 4')
        a('s_lshl_b32 s53, s26, 2')
        a('s_add_u32 s52, s52, s53')
        a('s_add_u32 s52, s52, s27')
        a('s_lshl_b32 s52, s52, 6')
        a('s_add_u32 s52, s52, %d' % STAMP)
        a('v_lshlrev_b32 v2, 2, v0')
        a('v_add_u32 v2, s52, v2')
        a('s_mov_b64 exec, 0xffff')
        a('buffer_store_dword v1, v2, s[32:35], 0 offen')
        a('s_waitcnt vmcnt(0)')
    def lds_wait(off, tmp, zero):
        L = a.newlabel('L_lw'); D = a.newlabel('L_lwd')
        a('s_mov_b32 s58, %d' % SPIN_LDS)
        a.label(L)
        a('ds_read_b128 v[%d:%d], v%d offset:%d' % (tmp, tmp + 3, zero, off))
        a('s_waitcnt lgkmcnt(0)')
        a('v_and_b32 v%d, v%d, v%d' % (tmp, tmp, tmp + 1))
        a('v_and_b32 v%d, v%d, v%d' % (tmp + 2, tmp + 2, tmp + 3))
        a('v_and_b32 v%d, v%d, v%d' % (tmp, tmp, tmp + 2))
        a('v_cmp_ne_u32 vcc, 0, v%d' % tmp)
        a('s_cbranch_vccnz %s' % D)
        a('s_sub_u32 s58, s58, 1')
        a('s_cbranch_scc1 %s' % D)
        a('s_sleep 1')
        a('s_branch %s' % L)
        a.label(D)
    def poll(name, loads, checks, st_first=None, st_cnt=None, fl='', nfast=0):
        L = 'L_%s_pl' % name; D = 'L_%s_pd' % name
        a('s_mov_b32 s58, 0')
        a('s_mov_b32 s61, %s' % ('0' if nfast or not dual else '0'))
        if dual and not nfast and name != 'R': a('s_mov_b32 s61, %d' % BOFF)
        a.label(L)
        for ld in loads: a((ld % 's61') + ' ' + fl)
        a('s_waitcnt vmcnt(0)')
        if stamps and st_first is not None:
            X = a.newlabel('L_nf')
            a('s_cmp_eq_u32 s58, 0')
            a('s_cbranch_scc0 %s' % X)
            stamp(st_first)
            a.label(X)
        a('v_cmp_ne_u32 vcc, v%d, v9' % checks[0])
        a('v_cmp_ne_u32 s[52:53], v%d, v9' % checks[1])
        a('s_or_b64 vcc, vcc, s[52:53]')
        a('s_cbranch_vccz %s' % D)
        a('s_add_u32 s58, s58, 1')
        if dual and nfast:
            a('s_cmp_ge_u32 s58, %d' % nfast)
            a('s_cselect_b32 s61, %d, 0' % BOFF)
        if pollsleep: a('s_sleep %d' % pollsleep)
        a('s_cmp_lt_u32 s58, %d' % SPIN_MEM)
        a('s_cbranch_scc1 %s' % L)
        a.label(D)
        if stamps and st_cnt is not None:
            a('s_add_u32 s%d, s58, 1' % (64 + 2 * st_cnt))
    def set_flag(off, zero, one):
        a('s_lshl_b32 s52, s27, 2')
        a('v_mov_b32 v%d, s52' % zero)
        a('v_mov_b32 v%d, 1' % one)
        a('ds_write_b32 v%d, v%d offset:%d' % (zero, one, off))
    def allreduce(op, v, t):
        for r in (8, 4, 2, 1):
            a('%s_dpp v%d, v%d, v%d row_ror:%d row_mask:0xf bank_mask:0xf' % (op, v, v, v, r))
        a('v_mov_b32 v%d, v%d' % (t, v))
        a('v_permlane16_swap_b32 v%d, v%d' % (v, t))
        a('%s v%d, v%d, v%d' % (op, v, v, t))
        a('v_mov_b32 v%d, v%d' % (t, v))
        a('v_permlane32_swap_b32 v%d, v%d' % (v, t))
        a('%s v%d, v%d, v%d' % (op, v, v, t))
    def masks(m, tmp, half_only_sreg=None, half_only=True):
        a('v_and_b32 v%d, 1, v0' % tmp)
        a('v_mov_b32 v%d, 0xffff' % (tmp + 1))
        a('v_lshlrev_b32 v%d, 4, v%d' % (tmp, tmp))
        a('v_lshlrev_b32 v%d, v%d, v%d' % (tmp + 1, tmp, tmp + 1))
        if half_only_sreg is not None:
            a('v_and_b32 v%d, %s, v0' % (tmp, half_only_sreg))
            a('v_cmp_eq_u32 vcc, 0, v%d' % tmp)
            a('v_cndmask_b32 v%d, 0, v%d, vcc' % (tmp + 1, tmp + 1))
        elif half_only:
            a('v_and_b32 v%d, 8, v0' % tmp)
            a('v_cmp_eq_u32 vcc, 0, v%d' % tmp)
            a('v_cndmask_b32 v%d, 0, v%d, vcc' % (tmp + 1, tmp + 1))
        a('v_bfe_u32 v%d, v0, 1, 2' % tmp)
        for r in range(4):
            a('v_cmp_eq_u32 vcc, %d, v%d' % (r, tmp))
            a('v_cndmask_b32 v%d, 0, v%d, vcc' % (m + r, tmp + 1))

    a('s_cmp_ge_u32 s2, 256')
    a('s_cbranch_scc1 L_end')
    if stamps:
        for k in range(1, 16): a('s_mov_b32 s%d, 0' % (64 + 2 * k))
    stamp(0)
    a('s_load_dwordx16 s[4:19], s[0:1], 0')
    a('s_load_dwordx4 s[20:23], s[0:1], 64')
    a('s_load_dwordx2 s[24:25], s[0:1], 80')
    a('v_lshrrev_b32 v1, 6, v0')
    a('v_and_b32 v0, 63, v0')
    a('v_readfirstlane_b32 s26, v1')
    a('s_and_b32 s28, s2, 7')
    a('s_lshl_b32 s28, s28, 2')
    a('s_lshr_b32 s29, s2, 6')
    a('s_add_u32 s28, s28, s29')
    a('s_lshr_b32 s29, s2, 3')
    if rotf == 0:
        a('s_and_b32 s59, s29, 15')
    elif rotf == 1:
        a('s_and_b32 s59, s2, 7'); a('s_lshl_b32 s59, s59, 1'); a('s_add_u32 s59, s59, s29'); a('s_and_b32 s59, s59, 15')
    elif rotf == 2:
        a('s_and_b32 s59, s28, 15')
    elif rotf == 3:
        a('s_lshl_b32 s59, s29, 1'); a('s_add_u32 s59, s59, s28'); a('s_and_b32 s59, s59, 15')
    elif rotf == 4:
        a('s_mul_i32 s59, s2, 5'); a('s_lshr_b32 s59, s59, 1'); a('s_and_b32 s59, s59, 15')
    if not rot: a('s_mov_b32 s59, 0')
    a('s_lshl_b32 s59, s59, 12')
    a('s_and_b32 s29, s29, 7')
    a('s_sub_u32 s30, s29, 5')
    a('s_and_b32 s27, s26, 3')
    a('s_lshr_b32 s26, s26, 2')
    a('v_and_b32 v1, 15, v0')
    a('v_lshrrev_b32 v2, 4, v0')
    a('v_lshlrev_b32 v3, 4, v0')
    a('s_waitcnt lgkmcnt(0)')
    srd(32, 's24', 's25', WS_RECORDS)
    a('s_cmp_eq_u32 s26, 1')
    a('s_cbranch_scc1 L_B')
    a('s_cmp_eq_u32 s26, 2')
    a('s_cbranch_scc1 L_CD')

    a('s_setprio %d' % prio[0])
    a('buffer_load_dword v9, off, s[32:35], 0 sc1')
    srd(36, 's4', 's5', 1280)
    a('s_cmp_lt_u32 s29, 5')
    a('s_cbranch_scc0 L_A_ffn')
    a('s_lshl_b32 s52, s28, 8')
    a('s_add_u32 s40, s10, s52')
    a('s_addc_u32 s41, s11, 0')
    a('s_sub_u32 s42, 5242880, s52')
    a('s_mov_b32 s43, 0x20000')
    a('s_mov_b32 s53, 8192')
    a('s_mov_b32 s54, 4')
    a('s_lshl_b32 s55, s29, 7')
    a('s_lshl_b32 s52, s27, 5')
    a('s_add_u32 s55, s55, s52')
    a('s_mov_b32 s56, -1')
    a('s_mov_b32 s57, 0')
    a('s_mov_b32 s31, 8')
    a('s_mul_i32 s60, s28, 5')
    a('s_add_u32 s60, s60, s29')
    a('s_lshl_b32 s60, s60, 10')
    a('s_add_u32 s60, s60, %d' % X1Q)
    a('s_branch L_A_go')
    a.label('L_A_ffn')
    a('s_cmp_ge_u32 s28, 27')
    a('s_cbranch_scc1 L_A_none')
    a('s_lshl_b32 s52, s28, 7')
    a('s_add_u32 s40, s16, s52')
    a('s_addc_u32 s41, s17, 0')
    a('s_sub_u32 s42, 2211840, s52')
    a('s_mov_b32 s43, 0x20000')
    a('s_mov_b32 s53, 3456')
    a('s_mov_b32 s54, 3')
    a('s_lshl_b32 s55, s30, 8')
    a('s_lshl_b32 s52, s27, 6')
    a('s_add_u32 s55, s55, s52')
    a('s_mov_b32 s56, 0x00ff00ff')
    a('s_mov_b32 s57, 0xff00ff00')
    a('s_mov_b32 s31, 0')
    a('s_mul_i32 s60, s28, 3')
    a('s_add_u32 s60, s60, s30')
    a('s_lshl_b32 s60, s60, 10')
    a('s_add_u32 s60, s60, %d' % X1H)
    a.label('L_A_go')
    a('v_lshrrev_b32 v14, s54, v0')
    a('s_lshl_b32 s52, 1, s54')
    a('s_sub_u32 s52, s52, 1')
    a('v_and_b32 v15, s52, v0')
    a('v_lshlrev_b32 v14, 3, v14')
    a('v_add_u32 v14, s55, v14')
    a('v_mul_lo_u32 v88, v14, s53')
    a('v_lshlrev_b32 v15, 4, v15')
    a('v_add_u32 v88, v88, v15')
    a('v_lshlrev_b32 v14, 1, v14')
    a('v_lshlrev_b32 v15, 2, v0')
    a('buffer_load_dwordx4 v[4:7], v3, s[36:39], 0 offen')
    a('buffer_load_dword v8, v15, s[36:39], 0 offen offset:1024')
    a('buffer_load_dwordx4 v[10:13], v14, s[36:39], 0 offen')
    a('s_mov_b32 s52, 0')
    for i in range(8):
        a('buffer_load_dwordx4 v[%d:%d], v88, s[40:43], s52 offen %s' % (16 + 4 * i, 19 + 4 * i, ntA))
        if i < 7: a('s_add_u32 s52, s52, s53')
    stamp(1)
    a('v_mov_b32 v89, 0')
    a('ds_write_b32 v15, v89')
    a('s_waitcnt lgkmcnt(0)')
    a('s_barrier')
    if streamonly:
        a('s_waitcnt vmcnt(0)'); stamp(2); write_stamps(0); a('s_endpgm')
    masks(80, 90, half_only_sreg='s31')
    a('s_waitcnt vmcnt(8)')
    stamp(2)
    a('v_add_u32 v9, 0x%x, v9' % TAGC)
    for k in range(4):
        a('v_lshlrev_b32 v%d, 16, v%d' % (90 + 2 * k, 4 + k))
        a('v_and_b32 v%d, 0xffff0000, v%d' % (91 + 2 * k, 4 + k))
    a('v_lshlrev_b32 v98, 16, v8')
    a('v_and_b32 v99, 0xffff0000, v8')
    a('v_add_f32 v100, v90, v91'); a('v_add_f32 v101, v92, v93'); a('v_add_f32 v102, v94, v95'); a('v_add_f32 v103, v96, v97'); a('v_add_f32 v104, v98, v99')
    a('v_add_f32 v100, v100, v101'); a('v_add_f32 v102, v102, v103'); a('v_add_f32 v100, v100, v104'); a('v_add_f32 v100, v100, v102')
    allreduce('v_add_f32', 100, 101)
    a('v_mul_f32 v100, 0x%x, v100' % INV640)
    for k in range(10):
        a('v_sub_f32 v%d, v%d, v100' % (90 + k, 90 + k))
    a('v_mul_f32 v101, v90, v90')
    a('v_mul_f32 v102, v91, v91')
    for k in range(2, 10, 2):
        a('v_fmac_f32 v101, v%d, v%d' % (90 + k, 90 + k))
        a('v_fmac_f32 v102, v%d, v%d' % (91 + k, 91 + k))
    a('v_add_f32 v101, v101, v102')
    allreduce('v_add_f32', 101, 102)
    a('v_mul_f32 v101, 0x%x, v101' % INV640)
    a('v_cvt_pk_bf16_f32 v102, v100, v101')
    a('v_lshlrev_b32 v100, 16, v102')
    a('v_and_b32 v101, 0xffff0000, v102')
    a('v_add_f32 v101, 0x%x, v101' % EPS)
    a('v_cvt_pk_bf16_f32 v101, v101, v101')
    a('v_and_b32 v101, 0xffff0000, v101')
    a('v_sqrt_f32 v101, v101')
    a('v_cvt_pk_bf16_f32 v101, v101, v101')
    a('v_and_b32 v101, 0xffff0000, v101')
    a('v_rcp_f32 v101, v101')
    for k in range(4):
        a('v_lshlrev_b32 v%d, 16, v%d' % (90 + 2 * k, 10 + k))
        a('v_and_b32 v%d, 0xffff0000, v%d' % (91 + 2 * k, 10 + k))
    for k in range(8): a('v_sub_f32 v%d, v%d, v100' % (90 + k, 90 + k))
    for k in range(8): a('v_cvt_pk_bf16_f32 v%d, v%d, v%d' % (90 + k, 90 + k, 90 + k))
    for k in range(8): a('v_and_b32 v%d, 0xffff0000, v%d' % (90 + k, 90 + k))
    for k in range(8): a('v_mul_f32 v%d, v%d, v101' % (90 + k, 90 + k))
    for k in range(8): a('v_cvt_pk_bf16_f32 v%d, v%d, v%d' % (90 + k, 90 + k, 90 + k))
    for k in range(8):
        for r in range(4):
            a('v_and_b32 v%d, v%d, v%d' % (48 + 4 * k + r, 90 + k, 80 + r))
    stamp(3)
    for i in range(8):
        a('s_waitcnt vmcnt(%d)' % (7 - i))
        a('v_mfma_f32_16x16x32_bf16 v[84:87], v[%d:%d], v[%d:%d], %s' % (48 + 4 * i, 51 + 4 * i, 16 + 4 * i, 19 + 4 * i, '0' if i == 0 else 'v[84:87]'))
    stamp(4)
    a('v_lshlrev_b32 v90, 5, v1')
    a('v_and_b32 v91, 16, v0')
    a('s_lshl_b32 s52, s27, 9')
    a('v_add3_u32 v90, v90, v91, s52')
    a('s_mov_b64 exec, s[56:57]')
    a('ds_write_b128 v90, v[84:87] offset:%d' % APART)
    a('s_mov_b64 exec, -1')
    set_flag(FLAG_A, 91, 92)
    a('s_cmp_lg_u32 s27, 0')
    a('s_cbranch_scc1 L_A_poll')
    a('v_mov_b32 v89, 0')
    lds_wait(FLAG_A, 92, 89)
    a('v_lshlrev_b32 v90, 3, v0')
    for w in range(4):
        a('ds_read_b64 v[%d:%d], v90 offset:%d' % (92 + 2 * w, 93 + 2 * w, APART + 512 * w))
    a('s_waitcnt lgkmcnt(0)')
    a('v_add_f32 v92, v92, v94'); a('v_add_f32 v93, v93, v95')
    a('v_add_f32 v96, v96, v98'); a('v_add_f32 v97, v97, v99')
    a('v_add_f32 v92, v92, v96'); a('v_add_f32 v93, v93, v97')
    a('s_cmp_lt_u32 s29, 5')
    a('s_cbranch_scc1 L_A_pub')
    a('v_mov_b32 v96, v92'); a('v_mov_b32 v97, v93')
    a('v_permlane32_swap_b32 v92, v96')
    a('v_permlane32_swap_b32 v93, v97')
    a('v_add_f32 v92, v92, v96'); a('v_add_f32 v93, v93, v97')
    a('s_mov_b32 exec_lo, -1'); a('s_mov_b32 exec_hi, 0')
    a.label('L_A_pub')
    a('v_mov_b32 v94, 0')
    a('v_mov_b32 v95, v9')
    a('v_add_u32 v90, s60, v3')
    if dual:
        a('buffer_store_dwordx4 v[92:95], v90, s[32:35], 0 offen')
        a('s_mov_b32 s52, %d' % BOFF)
        a('buffer_store_dwordx4 v[92:95], v90, s[32:35], s52 offen sc1')
    else:
        a('buffer_store_dwordx4 v[92:95], v90, s[32:35], 0 offen %s' % x1st)
    a('s_mov_b64 exec, -1')
    stamp(5)
    a('s_branch L_A_poll')
    a.label('L_A_none')
    a('v_mov_b32 v89, 0')
    a('v_lshlrev_b32 v15, 2, v0')
    a('ds_write_b32 v15, v89')
    a('s_waitcnt lgkmcnt(0)')
    a('s_barrier')
    a('s_waitcnt vmcnt(0)')
    if streamonly:
        stamp(2); write_stamps(0); a('s_endpgm')
    a('v_add_u32 v9, 0x%x, v9' % TAGC)
    a.label('L_A_poll')
    a('s_mul_i32 s52, s28, 5')
    a('s_lshl_b32 s52, s52, 10')
    a('s_lshl_b32 s53, s27, 8')
    a('s_add_u32 s52, s52, s53')
    a('s_add_u32 s52, s52, %d' % X1Q)
    a('v_lshlrev_b32 v90, 4, v1')
    a('v_add_u32 v91, s52, v90')
    a('v_lshlrev_b32 v90, 10, v2')
    a('v_add_u32 v90, v91, v90')
    a('v_add_u32 v91, 4096, v91')
    poll('A', ['buffer_load_dwordx4 v[92:95], v90, s[32:35], %s offen', 'buffer_load_dwordx4 v[96:99], v91, s[32:35], %s offen'], (95, 99), 8, 9, x1ld, nf1)
    stamp(6)
    a('v_permlane32_swap_b32 v92, v93')
    a('v_add_f32 v92, v92, v93')
    a('v_mov_b32 v93, v92')
    a('v_permlane16_swap_b32 v92, v93')
    a('v_add_f32 v92, v92, v93')
    a('v_cmp_gt_u32 vcc, 32, v0')
    a('v_cndmask_b32 v96, v97, v96, vcc')
    a('v_add_f32 v92, v92, v96')
    a('v_cvt_pk_bf16_f32 v92, v92, v92')
    a('v_lshrrev_b32 v93, 5, v0')
    a('v_lshl_add_u32 v93, v1, 1, v93')
    a('s_lshl_b32 s52, s27, 5')
    a('v_add_u32 v93, s52, v93')
    a('v_lshlrev_b32 v93, 1, v93')
    a('ds_write_b16 v93, v92 offset:%d' % QL)
    set_flag(FLAG_Q, 91, 94)
    stamp(7)
    write_stamps(0)
    a('s_endpgm')

    a.label('L_B')
    a('s_setprio %d' % prio[1])
    a('s_lshl_b32 s52, s28, 21')
    a('s_lshl_b32 s53, s29, 16')
    a('s_add_u32 s52, s52, s53')
    a('s_add_u32 s52, s52, %d' % (6144 * 256))
    a('s_add_u32 s44, s6, s52')
    a('s_addc_u32 s45, s7, 0')
    a('s_mov_b32 s46, 65536')
    a('s_mov_b32 s47, 0x20000')
    a('s_lshl_b32 s52, s27, 10')
    a('v_add_u32 v4, s52, v3')
    a('s_barrier')
    a('s_mov_b32 s52, s59')
    for i in range(16):
        a('buffer_load_dwordx4 v[%d:%d], v4, s[44:47], s52 offen %s' % (16 + 4 * i, 19 + 4 * i, ntK))
        if i < 15:
            a('s_add_u32 s52, s52, 4096')
            a('s_and_b32 s52, s52, 0xffff')
    stamp(1)
    if streamonly:
        a('s_waitcnt vmcnt(0)'); stamp(2); write_stamps(1); a('s_endpgm')
    a('v_mov_b32 v5, 0')
    lds_wait(FLAG_Q, 84, 5)
    stamp(2)
    a('v_lshlrev_b32 v6, 4, v1')
    a('ds_read_b128 v[80:83], v6 offset:%d' % QL)
    a('s_waitcnt lgkmcnt(0)')
    for i in range(16):
        a('s_waitcnt vmcnt(%d)' % (15 - i))
        k = 16 + 4 * i
        a('v_dot2_f32_bf16 v%d, v%d, v80, 0' % (84 + i, k))
        for r in range(1, 4):
            a('v_dot2_f32_bf16 v%d, v%d, v%d, v%d' % (84 + i, k + r, 80 + r, 84 + i))
    stamp(3)
    for i in range(8):
        a('v_add_f32_dpp v%d, v%d, v%d row_ror:8 row_mask:0xf bank_mask:0x3' % (84 + i, 84 + i, 84 + i))
        a('v_add_f32_dpp v%d, v%d, v%d row_ror:8 row_mask:0xf bank_mask:0xc' % (84 + i, 92 + i, 92 + i))
    for i in range(4):
        a('v_add_f32_dpp v%d, v%d, v%d row_half_mirror row_mask:0xf bank_mask:0x5' % (84 + i, 84 + i, 84 + i))
        a('v_add_f32_dpp v%d, v%d, v%d row_half_mirror row_mask:0xf bank_mask:0xa' % (84 + i, 88 + i, 88 + i))
    for i in range(4):
        a('v_add_f32_dpp v%d, v%d, v%d quad_perm:[2,3,0,1] row_mask:0xf bank_mask:0xf' % (88 + i, 84 + i, 84 + i))
    a('v_and_b32 v6, 2, v0')
    a('v_cmp_eq_u32 vcc, 0, v6')
    a('v_cndmask_b32 v84, v90, v88, vcc')
    a('v_cndmask_b32 v85, v91, v89, vcc')
    a('v_and_b32 v6, 1, v0')
    a('v_add_f32_dpp v88, v84, v84 quad_perm:[1,0,3,2] row_mask:0xf bank_mask:0xf')
    a('v_add_f32_dpp v89, v85, v85 quad_perm:[1,0,3,2] row_mask:0xf bank_mask:0xf')
    a('v_cmp_eq_u32 vcc, 0, v6')
    a('v_cndmask_b32 v84, v89, v88, vcc')
    a('v_cvt_pk_bf16_f32 v84, v84, v84')
    a('v_and_b32 v84, 0xffff0000, v84')
    a('v_mul_f32 v84, 0x%x, v84' % SCALE)
    a('v_cvt_pk_bf16_f32 v84, v84, v84')
    a('v_and_b32 v84, 0xffff0000, v84')
    a('v_mov_b32 v85, v84')
    allreduce('v_max_f32', 85, 86)
    a('v_sub_f32 v86, v84, v85')
    a('v_mul_f32 v86, 0x%x, v86' % LOG2E)
    a('v_exp_f32 v86, v86')
    a('v_cvt_pk_bf16_f32 v87, v86, v86')
    a('s_lshl_b32 s52, s27, 8')
    a('v_lshlrev_b32 v6, 2, v0')
    a('v_add_u32 v6, s52, v6')
    a('ds_write_b32 v6, v87 offset:%d' % PL)
    allreduce('v_add_f32', 86, 88)
    a('v_mov_b32 v88, v85')
    a('v_mov_b32 v89, v86')
    a('s_lshl_b32 s52, s27, 3')
    a('v_mov_b32 v6, s52')
    a('ds_write_b64 v6, v[88:89] offset:%d' % ML)
    set_flag(FLAG_P, 6, 7)
    stamp(4)
    write_stamps(1)
    a('s_endpgm')

    a.label('L_CD')
    a('s_setprio %d' % prio[2])
    a('buffer_load_dword v9, off, s[32:35], 0 sc1')
    srd(36, 's4', 's5', 1280)
    a('s_lshl_b32 s52, s2, 3')
    a('v_and_b32 v7, 1, v0')
    a('v_lshlrev_b32 v7, 2, v7')
    a('v_add_u32 v10, s52, v7')
    a('buffer_load_dword v8, v10, s[36:39], 0 offen')
    a('s_lshl_b32 s52, s28, 21')
    a('s_lshl_b32 s53, s29, 16')
    a('s_add_u32 s52, s52, s53')
    a('s_add_u32 s52, s52, %d' % (6144 * 256))
    a('s_add_u32 s44, s8, s52')
    a('s_addc_u32 s45, s9, 0')
    a('s_mov_b32 s46, 65536')
    a('s_mov_b32 s47, 0x20000')
    a('s_lshl_b32 s52, s27, 10')
    a('v_add_u32 v4, s52, v3')
    a('s_cmp_lt_u32 s29, 5')
    a('s_cbranch_scc0 L_C_ffn')
    a('s_mul_i32 s52, s28, %d' % (128 * 1280))
    a('s_lshl_b32 s53, s29, 8')
    a('s_add_u32 s52, s52, s53')
    a('s_add_u32 s40, s12, s52')
    a('s_addc_u32 s41, s13, 0')
    a('s_sub_u32 s42, 5242880, s52')
    a('s_mov_b32 s43, 0x20000')
    a('s_mul_i32 s52, s27, %d' % (32 * 1280))
    a('v_mul_u32_u24 v5, %d, v2' % (8 * 1280))
    a('v_lshlrev_b32 v6, 4, v1')
    a('v_add3_u32 v5, v5, v6, s52')
    a('v_add_u32 v6, 5120, v5')
    a('s_branch L_C_go')
    a.label('L_C_ffn')
    a('s_min_u32 s54, s28, 26')
    a('s_mul_i32 s52, s54, %d' % (64 * 1280))
    a('s_lshl_b32 s53, s30, 9')
    a('s_add_u32 s52, s52, s53')
    a('s_add_u32 s40, s18, s52')
    a('s_addc_u32 s41, s19, 0')
    a('s_sub_u32 s42, 2211840, s52')
    a('s_mov_b32 s43, 0x20000')
    a('s_mul_i32 s52, s27, %d' % (16 * 1280))
    a('v_mul_u32_u24 v5, %d, v2' % (4 * 1280))
    a('v_lshlrev_b32 v6, 4, v1')
    a('v_add3_u32 v5, v5, v6, s52')
    a('v_add_u32 v6, 256, v5')
    a('s_cmp_eq_u32 s30, 2')
    a('s_cbranch_scc0 L_C_f1')
    a('v_mov_b32 v6, 0x7ff00000')
    a.label('L_C_f1')
    a('s_cmp_ge_u32 s28, 27')
    a('s_cbranch_scc0 L_C_go')
    a('v_mov_b32 v5, 0x7ff00000')
    a('v_mov_b32 v6, 0x7ff00000')
    a.label('L_C_go')
    a('s_barrier')
    a('s_mov_b32 s52, s59')
    for i in range(16):
        a('buffer_load_dwordx4 v[%d:%d], v4, s[44:47], s52 offen %s' % (16 + 4 * i, 19 + 4 * i, ntV))
        if i < 15:
            a('s_add_u32 s52, s52, 4096')
            a('s_and_b32 s52, s52, 0xffff')
    for i in range(8):
        a('buffer_load_dwordx4 v[%d:%d], v%d, s[40:43], 0 offen offset:%d %s' % (80 + 4 * i, 83 + 4 * i, 5 if i < 4 else 6, (i % 4) * 1280, ntD))
    stamp(1)
    if streamonly:
        a('s_waitcnt vmcnt(8)'); stamp(2); a('s_waitcnt vmcnt(0)'); stamp(3); write_stamps(2); a('s_endpgm')
    masks(128, 148)
    a('v_mov_b32 v11, 0')
    lds_wait(FLAG_P, 148, 11)
    stamp(2)
    a('s_lshl_b32 s52, s27, 8')
    a('v_lshlrev_b32 v12, 6, v2')
    a('v_add_u32 v12, s52, v12')
    for k in range(4):
        a('ds_read_b128 v[%d:%d], v12 offset:%d' % (112 + 4 * k, 115 + 4 * k, PL + 16 * k))
    a('ds_read_b128 v[148:151], v11 offset:%d' % ML)
    a('ds_read_b128 v[152:155], v11 offset:%d' % (ML + 16))
    a('s_waitcnt lgkmcnt(0)')
    a('v_max_f32 v156, v148, v150'); a('v_max_f32 v157, v152, v154'); a('v_max_f32 v156, v156, v157')
    for k in range(4):
        a('v_sub_f32 v%d, v%d, v156' % (148 + 2 * k, 148 + 2 * k))
    for k in range(4):
        a('v_mul_f32 v%d, 0x%x, v%d' % (148 + 2 * k, LOG2E, 148 + 2 * k))
    for k in range(4):
        a('v_exp_f32 v%d, v%d' % (148 + 2 * k, 148 + 2 * k))
    a('v_mul_f32 v157, v148, v149')
    a('v_fmac_f32 v157, v150, v151'); a('v_fmac_f32 v157, v152, v153'); a('v_fmac_f32 v157, v154, v155')
    a('v_mov_b32 v158, v148')
    for k in range(1, 4):
        a('s_cmp_eq_u32 s27, %d' % k)
        a('s_cselect_b64 vcc, -1, 0')
        a('v_cndmask_b32 v158, v158, v%d, vcc' % (148 + 2 * k))
    def aop(i):
        b = 132 + 4 * (i & 1)
        for r in range(4):
            a('v_and_b32 v%d, v%d, v%d' % (b + r, 112 + i, 128 + r))
    aop(0)
    for i in range(16):
        if i < 15: aop(i + 1)
        a('s_waitcnt vmcnt(%d)' % (8 + 15 - i))
        b = 132 + 4 * (i & 1)
        a('v_mfma_f32_16x16x32_bf16 v[140:143], v[%d:%d], v[%d:%d], %s' % (b, b + 3, 16 + 4 * i, 19 + 4 * i, '0' if i == 0 else 'v[140:143]'))
    stamp(3)
    a('v_add_u32 v9, 0x%x, v9' % TAGC)
    a('v_lshlrev_b32 v12, 5, v1')
    a('v_and_b32 v13, 16, v0')
    a('s_lshl_b32 s52, s27, 9')
    a('v_add3_u32 v12, v12, v13, s52')
    for r in range(4):
        a('v_mul_f32 v%d, v%d, v158' % (140 + r, 140 + r))
    a('s_mov_b32 exec_lo, -1'); a('s_mov_b32 exec_hi, 0')
    a('ds_write_b128 v12, v[140:143] offset:%d' % PVP)
    a('s_mov_b64 exec, -1')
    a('s_waitcnt lgkmcnt(0)')
    a('s_barrier')
    a('s_cmp_lg_u32 s27, 0')
    a('s_cbranch_scc1 L_C_x2done')
    a('v_and_b32 v12, 31, v0')
    a('v_lshlrev_b32 v12, 4, v12')
    for w in range(4):
        a('ds_read_b128 v[%d:%d], v12 offset:%d' % (16 + 4 * w, 19 + 4 * w, PVP + 512 * w))
    a('s_lshl_b32 s52, s28, 3')
    a('s_add_u32 s52, s52, s29')
    a('s_lshl_b32 s52, s52, 10')
    a('s_add_u32 s52, s52, %d' % X2)
    a('v_add_u32 v13, s52, v3')
    a('v_cmp_gt_u32 vcc, 32, v0')
    a('s_waitcnt lgkmcnt(0)')
    for r in range(4):
        a('v_add_f32 v%d, v%d, v%d' % (16 + r, 16 + r, 20 + r))
        a('v_add_f32 v%d, v%d, v%d' % (24 + r, 24 + r, 28 + r))
    for r in range(4):
        a('v_add_f32 v%d, v%d, v%d' % (16 + r, 16 + r, 24 + r))
    a('v_cndmask_b32 v20, v19, v16, vcc')
    a('v_cndmask_b32 v21, v156, v17, vcc')
    a('v_cndmask_b32 v22, v157, v18, vcc')
    a('v_mov_b32 v23, v9')
    if dual:
        a('buffer_store_dwordx4 v[20:23], v13, s[32:35], 0 offen')
        a('s_mov_b32 s52, %d' % BOFF)
        a('buffer_store_dwordx4 v[20:23], v13, s[32:35], s52 offen sc1')
    else:
        a('buffer_store_dwordx4 v[20:23], v13, s[32:35], 0 offen %s' % x2st)
    a.label('L_C_x2done')
    stamp(4)
    a('s_cmp_lt_u32 s29, 5')
    a('s_cbranch_scc0 L_D_ffn')
    a('v_and_b32 v12, 7, v0')
    a('v_lshlrev_b32 v12, 10, v12')
    a('v_lshrrev_b32 v13, 3, v0')
    a('v_lshlrev_b32 v13, 4, v13')
    a('s_lshl_b32 s52, s28, 13')
    a('s_lshl_b32 s53, s27, 7')
    a('s_add_u32 s52, s52, s53')
    a('s_add_u32 s52, s52, %d' % X2)
    a('v_add3_u32 v12, v12, v13, s52')
    poll('D', ['buffer_load_dwordx4 v[16:19], v12, s[32:35], %s offen', 'buffer_load_dwordx4 v[20:23], v12, s[32:35], %s offen offset:512'], (19, 23), 10, 11, x2ld, nf2)
    stamp(5)
    def red8(op, v):
        return ['%s_dpp v%d, v%d, v%d row_half_mirror row_mask:0xf bank_mask:0xf' % (op, v, v, v),
                '%s_dpp v%d, v%d, v%d quad_perm:[1,0,3,2] row_mask:0xf bank_mask:0xf' % (op, v, v, v),
                '%s_dpp v%d, v%d, v%d quad_perm:[2,3,0,1] row_mask:0xf bank_mask:0xf' % (op, v, v, v)]
    a('v_mov_b32 v24, v21')
    for s_ in red8('v_max_f32', 24): a(s_)
    a('v_sub_f32 v21, v21, v24')
    a('v_mul_f32 v21, 0x%x, v21' % LOG2E)
    a('v_exp_f32 v21, v21')
    vals = (22, 16, 17, 18, 20)
    for v in vals: a('v_mul_f32 v%d, v%d, v21' % (v, v))
    for st in range(3):
        for v in vals: a(red8('v_add_f32', v)[st])
    a('v_rcp_f32 v22, v22')
    for v in vals[1:]: a('v_mul_f32 v%d, v%d, v22' % (v, v))
    for v in vals[1:]: a('v_cvt_pk_bf16_f32 v%d, v%d, v%d' % (v, v, v))
    ov = (16, 17, 18, 20)
    for i in range(8):
        for r in range(4):
            if i < 4: a('v_and_b32 v%d, v%d, v%d' % (24 + 4 * i + r, ov[i], 128 + r))
            else: a('v_and_b32_dpp v%d, v%d, v%d row_ror:8 row_mask:0xf bank_mask:0xf' % (24 + 4 * i + r, ov[i - 4], 128 + r))
    for i in range(8):
        a('v_mfma_f32_16x16x32_bf16 v[140:143], v[%d:%d], v[%d:%d], %s' % (24 + 4 * i, 27 + 4 * i, 80 + 4 * i, 83 + 4 * i, '0' if i == 0 else 'v[140:143]'))
    a('s_lshl_b32 s60, s29, 5')
    a('s_add_u32 s60, s60, s28')
    a('s_lshl_b32 s60, s60, 10')
    a('s_add_u32 s60, s60, %d' % X3A)
    a('s_mov_b32 s61, 1')
    a('s_branch L_D_red')
    a.label('L_D_ffn')
    a('s_cmp_ge_u32 s28, 27')
    a('s_cbranch_scc1 L_final')
    a('v_and_b32 v12, 3, v0')
    a('v_min_u32 v13, 2, v12')
    a('v_lshlrev_b32 v13, 10, v13')
    a('v_lshlrev_b32 v14, 5, v2')
    a('s_mul_i32 s52, s28, 3072')
    a('s_lshl_b32 s53, s27, 7')
    a('s_add_u32 s52, s52, s53')
    a('s_add_u32 s52, s52, %d' % X1H)
    a('v_add3_u32 v13, v13, v14, s52')
    poll('F', ['buffer_load_dwordx4 v[16:19], v13, s[32:35], %s offen', 'buffer_load_dwordx4 v[20:23], v13, s[32:35], %s offen offset:16'], (19, 23), 10, 11, x1ld, nfh)
    stamp(5)
    a('v_cmp_gt_u32 vcc, 3, v12')
    hv = (16, 17, 20, 21)
    for v in hv: a('v_cndmask_b32 v%d, 0, v%d, vcc' % (v, v))
    for v in hv: a('v_add_f32_dpp v%d, v%d, v%d quad_perm:[1,0,3,2] row_mask:0xf bank_mask:0xf' % (v, v, v))
    for v in hv: a('v_add_f32_dpp v%d, v%d, v%d quad_perm:[2,3,0,1] row_mask:0xf bank_mask:0xf' % (v, v, v))
    for v in hv: a('v_cvt_pk_bf16_f32 v%d, v%d, v%d' % (v, v, v))
    for v in hv: a('v_and_b32 v%d, 0xffff0000, v%d' % (v, v))
    for k, v in enumerate(hv): a('v_mul_f32 v%d, 0x%x, v%d' % (24 + k, LOG2E ^ 0x80000000, v))
    for k in range(4): a('v_exp_f32 v%d, v%d' % (24 + k, 24 + k))
    for k in range(4): a('v_add_f32 v%d, 1.0, v%d' % (24 + k, 24 + k))
    for k in range(4): a('v_rcp_f32 v%d, v%d' % (24 + k, 24 + k))
    for k, v in enumerate(hv): a('v_mul_f32 v%d, v%d, v%d' % (v, v, 24 + k))
    for v in hv: a('v_cvt_pk_bf16_f32 v%d, v%d, v%d' % (v, v, v))
    for i in range(4):
        for r in range(4):
            a('v_and_b32 v%d, v%d, v%d' % (24 + 4 * i + r, hv[i], 128 + r))
    for i in range(4):
        a('v_mfma_f32_16x16x32_bf16 v[140:143], v[%d:%d], v[%d:%d], %s' % (24 + 4 * i, 27 + 4 * i, 80 + 4 * i, 83 + 4 * i, '0' if i == 0 else 'v[140:143]'))
        a('v_mfma_f32_16x16x32_bf16 v[144:147], v[%d:%d], v[%d:%d], %s' % (24 + 4 * i, 27 + 4 * i, 96 + 4 * i, 99 + 4 * i, '0' if i == 0 else 'v[144:147]'))
    a('s_lshl_b32 s60, s30, 6')
    a('s_add_u32 s60, s60, s28')
    a('s_lshl_b32 s60, s60, 10')
    a('s_add_u32 s60, s60, %d' % X3F)
    a('s_cmp_eq_u32 s30, 2')
    a('s_cselect_b32 s61, 1, 2')
    a.label('L_D_red')
    a('v_lshlrev_b32 v12, 5, v1')
    a('v_and_b32 v13, 16, v0')
    a('s_lshl_b32 s52, s27, 10')
    a('v_add3_u32 v12, v12, v13, s52')
    a('s_nop 7')
    a('s_mov_b32 exec_lo, -1'); a('s_mov_b32 exec_hi, 0')
    a('ds_write_b128 v12, v[140:143] offset:%d' % FIN)
    a('s_cmp_eq_u32 s61, 2')
    a('s_cbranch_scc0 L_D_w1')
    a('ds_write_b128 v12, v[144:147] offset:%d' % (FIN + 512))
    a.label('L_D_w1')
    a('s_mov_b64 exec, -1')
    a('s_waitcnt lgkmcnt(0)')
    a('s_barrier')
    stamp(6)
    a('s_and_b32 s52, s27, 1')
    a('s_cmp_lg_u32 s52, 0')
    a('s_cbranch_scc1 L_final')
    a('s_lshr_b32 s52, s27, 1')
    a('s_cmp_ge_u32 s52, s61')
    a('s_cbranch_scc1 L_final')
    a('s_lshl_b32 s53, s52, 9')
    a('v_lshlrev_b32 v12, 3, v0')
    a('v_add_u32 v12, s53, v12')
    for w in range(4):
        a('ds_read_b64 v[%d:%d], v12 offset:%d' % (16 + 2 * w, 17 + 2 * w, FIN + 1024 * w))
    a('s_lshl_b32 s53, s52, 15')
    a('s_add_u32 s53, s53, s60')
    a('v_add_u32 v13, s53, v3')
    a('s_waitcnt lgkmcnt(0)')
    a('v_add_f32 v16, v16, v18'); a('v_add_f32 v17, v17, v19')
    a('v_add_f32 v20, v20, v22'); a('v_add_f32 v21, v21, v23')
    a('v_add_f32 v16, v16, v20'); a('v_add_f32 v17, v17, v21')
    a('v_mov_b32 v18, 0')
    a('v_mov_b32 v19, v9')
    a('buffer_store_dwordx4 v[16:19], v13, s[32:35], 0 offen %s' % x3st)
    stamp(7)
    a.label('L_final')
    a('s_cmp_eq_u32 s27, 1')
    a('s_cbranch_scc0 L_CD_end')
    a('s_cmp_lt_u32 s2, 160')
    a('s_cbranch_scc0 L_CD_end')
    a('s_lshr_b32 s52, s2, 5')
    a('s_and_b32 s53, s2, 31')
    a('s_lshl_b32 s52, s52, 15')
    a('s_lshl_b32 s53, s53, 5')
    a('s_add_u32 s52, s52, s53')
    a('v_lshrrev_b32 v12, 1, v0')
    a('v_and_b32 v13, 1, v0')
    a('v_lshlrev_b32 v13, 4, v13')
    a('v_add_u32 v13, s52, v13')
    a('v_min_u32 v14, 26, v12')
    a('v_lshlrev_b32 v14, 10, v14')
    a('v_lshlrev_b32 v15, 10, v12')
    a('v_add_u32 v14, v14, v13')
    a('v_add_u32 v15, v15, v13')
    a('v_add_u32 v14, 0x%x, v14' % X3F)
    a('v_add_u32 v15, 0x%x, v15' % X3A)
    poll('R', ['buffer_load_dwordx4 v[16:19], v15, s[32:35], %s offen', 'buffer_load_dwordx4 v[20:23], v14, s[32:35], %s offen'], (19, 23), 12, 13, x3ld, 0)
    stamp(8)
    a('v_cmp_gt_u32 vcc, 27, v12')
    a('v_cndmask_b32 v20, 0, v20, vcc')
    a('v_cndmask_b32 v21, 0, v21, vcc')
    fv = (16, 17, 20, 21)
    for r in (2, 4, 8):
        for v in fv: a('v_add_f32_dpp v%d, v%d, v%d row_ror:%d row_mask:0xf bank_mask:0xf' % (v, v, v, r))
    for k, v in enumerate(fv): a('v_mov_b32 v%d, v%d' % (24 + k, v))
    for k, v in enumerate(fv): a('v_permlane16_swap_b32 v%d, v%d' % (v, 24 + k))
    for k, v in enumerate(fv): a('v_add_f32 v%d, v%d, v%d' % (v, v, 24 + k))
    for k, v in enumerate(fv): a('v_mov_b32 v%d, v%d' % (24 + k, v))
    for k, v in enumerate(fv): a('v_permlane32_swap_b32 v%d, v%d' % (v, 24 + k))
    for k, v in enumerate(fv): a('v_add_f32 v%d, v%d, v%d' % (v, v, 24 + k))
    a('v_cvt_pk_bf16_f32 v16, v16, v17')
    a('v_cvt_pk_bf16_f32 v20, v20, v21')
    a('v_lshlrev_b32 v24, 16, v8'); a('v_and_b32 v25, 0xffff0000, v8')
    a('v_lshlrev_b32 v26, 16, v16'); a('v_and_b32 v27, 0xffff0000, v16')
    a('v_add_f32 v24, v24, v26'); a('v_add_f32 v25, v25, v27')
    a('v_cvt_pk_bf16_f32 v24, v24, v25')
    a('v_lshlrev_b32 v26, 16, v20'); a('v_and_b32 v27, 0xffff0000, v20')
    a('v_lshlrev_b32 v28, 16, v24'); a('v_and_b32 v29, 0xffff0000, v24')
    a('v_add_f32 v26, v26, v28'); a('v_add_f32 v27, v27, v29')
    a('v_cvt_pk_bf16_f32 v26, v26, v27')
    srd(48, 's20', 's21', 1280)
    a('s_mov_b64 exec, 3')
    a('buffer_store_dword v26, v10, s[48:51], 0 offen')
    a('s_cmp_eq_u32 s2, 0')
    a('s_cbranch_scc0 L_CD_end')
    a('s_mov_b64 exec, 1')
    a('buffer_store_dword v9, off, s[32:35], 0 sc1')
    a.label('L_CD_end')
    stamp(9)
    write_stamps(2)
    a.label('L_end')
    a('s_endpgm')
    lines = hazard.fix(a.lines)
    return wrap('\n'.join(lines) + '\n', 256, 768, LDS_BYTES, 160, sgpr=100)

if __name__ == '__main__':
    out = sys.argv[1] if len(sys.argv) > 1 else 'k.s'
    kw = {}
    for arg in sys.argv[2:]:
        k, v = arg.split('=')
        kw[k] = eval(v)
    open(out, 'w').write(gen(**kw))
```

```python
import sys
from asmlib import *
import hazard

FLAG_A, FLAG_Q, FLAG_P = 0, 16, 32
QL, ML, PL, APART, PVP, FIN = 64, 320, 512, 2048, 4096, 6144
LDS_BYTES = 10240
X1Q, X1H, X2, X3A, X3F, STAMP = 0x1000, 0x30000, 0x50000, 0x90000, 0xC0000, 0x200000
BOFF = 0x100000
WS_RECORDS = 0x400000
TAGC = 0x9E3779B1
LOG2E = 0x3FB8AA3B
SCALE = 0x3DB504F3
INV640 = 0x3ACCCCCD
EPS = 0x3727C5AC
SPIN_LDS = 1 << 20
SPIN_MEM = 1 << 16

def gen(stamps=False, ntA='nt', ntK='nt', ntV='nt', ntD='nt', prio=(3, 2, 0), rot=True, st_flags='sc1', ld_flags='sc1', pollsleep=0, dbgtime=False, dbgwg=0, streamonly=False, rotf=0, x1st=None, x2st=None, x3st=None, x1ld=None, x2ld=None, x3ld=None, hmap=0, sadd=0, dual=True, nf1=6, nf2=16, nfh=4):
    x1st = st_flags if x1st is None else x1st; x2st = st_flags if x2st is None else x2st; x3st = st_flags if x3st is None else x3st
    x1ld = ld_flags if x1ld is None else x1ld; x2ld = ld_flags if x2ld is None else x2ld; x3ld = ld_flags if x3ld is None else x3ld
    a = Asm()
    stamp_idx = [0]
    if dbgtime: stamps = True
    def stamp(k):
        if stamps: a('s_memrealtime s[%d:%d]' % (64 + 2 * k, 65 + 2 * k))
    def srd(r, lo, hi, rec):
        a('s_mov_b32 s%d, %s' % (r, lo)); a('s_mov_b32 s%d, %s' % (r + 1, hi))
        a('s_mov_b32 s%d, %s' % (r + 2, rec)); a('s_mov_b32 s%d, 0x20000' % (r + 3))
    def write_dbg(role):
        slots = {0: {0: 0, 2: 1, 4: 2, 5: 3, 6: 4}, 1: {1: 5, 2: 6, 3: 7, 4: 8}, 2: {1: 9, 2: 10, 3: 11, 5: 12, 6: 13, 8: 14, 9: 15}}[role]
        L = a.newlabel('L_nodbg')
        a('s_cmp_eq_u32 s2, %d' % dbgwg)
        a('s_cbranch_scc0 %s' % L)
        a('s_cmp_eq_u32 s27, %d' % (1 if role == 2 else 0))
        a('s_cbranch_scc0 %s' % L)
        a('s_waitcnt lgkmcnt(0)')
        a('s_mov_b64 exec, -1')
        a('v_mov_b32 v1, 0')
        mask = 0
        for k, sl in slots.items():
            a('v_writelane_b32 v1, s%d, %d' % (64 + 2 * k, sl)); mask |= 1 << sl
        srd(48, 's22', 's23', 256)
        a('v_lshlrev_b32 v2, 2, v0')
        a('s_mov_b64 exec, 0x%x' % mask)
        a('buffer_store_dword v1, v2, s[48:51], 0 offen')
        a('s_waitcnt vmcnt(0)')
        a.label(L)
    def write_stamps(role=0):
        if not stamps: return
        if dbgtime: return write_dbg(role)
        a('s_waitcnt lgkmcnt(0)')
        a('s_mov_b64 exec, -1')
        a('v_mov_b32 v1, 0')
        for k in range(16):
            a('v_writelane_b32 v1, s%d, %d' % (64 + 2 * k, k))
        a('s_lshl_b32 s52, s2, 4')
        a('s_lshl_b32 s53, s26, 2')
        a('s_add_u32 s52, s52, s53')
        a('s_add_u32 s52, s52, s27')
        a('s_lshl_b32 s52, s52, 6')
        a('s_add_u32 s52, s52, %d' % STAMP)
        a('v_lshlrev_b32 v2, 2, v0')
        a('v_add_u32 v2, s52, v2')
        a('s_mov_b64 exec, 0xffff')
        a('buffer_store_dword v1, v2, s[32:35], 0 offen')
        a('s_waitcnt vmcnt(0)')
    def lds_wait(off, tmp, zero):
        L = a.newlabel('L_lw'); D = a.newlabel('L_lwd')
        a('s_mov_b32 s58, %d' % SPIN_LDS)
        a.label(L)
        a('ds_read_b128 v[%d:%d], v%d offset:%d' % (tmp, tmp + 3, zero, off))
        a('s_waitcnt lgkmcnt(0)')
        a('v_and_b32 v%d, v%d, v%d' % (tmp, tmp, tmp + 1))
        a('v_and_b32 v%d, v%d, v%d' % (tmp + 2, tmp + 2, tmp + 3))
        a('v_and_b32 v%d, v%d, v%d' % (tmp, tmp, tmp + 2))
        a('v_cmp_ne_u32 vcc, 0, v%d' % tmp)
        a('s_cbranch_vccnz %s' % D)
        a('s_sub_u32 s58, s58, 1')
        a('s_cbranch_scc1 %s' % D)
        a('s_sleep 1')
        a('s_branch %s' % L)
        a.label(D)
    def poll(name, loads, checks, st_first=None, st_cnt=None, fl='', nfast=0):
        L = 'L_%s_pl' % name; D = 'L_%s_pd' % name
        a('s_mov_b32 s58, 0')
        a('s_mov_b32 s61, %s' % ('0' if nfast or not dual else '0'))
        if dual and not nfast and name != 'R': a('s_mov_b32 s61, %d' % BOFF)
        a.label(L)
        for ld in loads: a((ld % 's61') + ' ' + fl)
        a('s_waitcnt vmcnt(0)')
        if stamps and st_first is not None:
            X = a.newlabel('L_nf')
            a('s_cmp_eq_u32 s58, 0')
            a('s_cbranch_scc0 %s' % X)
            stamp(st_first)
            a.label(X)
        a('v_cmp_ne_u32 vcc, v%d, v9' % checks[0])
        a('v_cmp_ne_u32 s[52:53], v%d, v9' % checks[1])
        a('s_or_b64 vcc, vcc, s[52:53]')
        a('s_cbranch_vccz %s' % D)
        a('s_add_u32 s58, s58, 1')
        if dual and nfast:
            a('s_cmp_ge_u32 s58, %d' % nfast)
            a('s_cselect_b32 s61, %d, 0' % BOFF)
        if pollsleep: a('s_sleep %d' % pollsleep)
        a('s_cmp_lt_u32 s58, %d' % SPIN_MEM)
        a('s_cbranch_scc1 %s' % L)
        a.label(D)
        if stamps and st_cnt is not None:
            a('s_add_u32 s%d, s58, 1' % (64 + 2 * st_cnt))
    def set_flag(off, zero, one):
        a('s_lshl_b32 s52, s27, 2')
        a('v_mov_b32 v%d, s52' % zero)
        a('v_mov_b32 v%d, 1' % one)
        a('ds_write_b32 v%d, v%d offset:%d' % (zero, one, off))
    def allreduce(op, v, t):
        for r in (8, 4, 2, 1):
            a('%s_dpp v%d, v%d, v%d row_ror:%d row_mask:0xf bank_mask:0xf' % (op, v, v, v, r))
        a('v_mov_b32 v%d, v%d' % (t, v))
        a('v_permlane16_swap_b32 v%d, v%d' % (v, t))
        a('%s v%d, v%d, v%d' % (op, v, v, t))
        a('v_mov_b32 v%d, v%d' % (t, v))
        a('v_permlane32_swap_b32 v%d, v%d' % (v, t))
        a('%s v%d, v%d, v%d' % (op, v, v, t))
    def masks(m, tmp, half_only_sreg=None, half_only=True):
        a('v_and_b32 v%d, 1, v0' % tmp)
        a('v_mov_b32 v%d, 0xffff' % (tmp + 1))
        a('v_lshlrev_b32 v%d, 4, v%d' % (tmp, tmp))
        a('v_lshlrev_b32 v%d, v%d, v%d' % (tmp + 1, tmp, tmp + 1))
        if half_only_sreg is not None:
            a('v_and_b32 v%d, %s, v0' % (tmp, half_only_sreg))
            a('v_cmp_eq_u32 vcc, 0, v%d' % tmp)
            a('v_cndmask_b32 v%d, 0, v%d, vcc' % (tmp + 1, tmp + 1))
        elif half_only:
            a('v_and_b32 v%d, 8, v0' % tmp)
            a('v_cmp_eq_u32 vcc, 0, v%d' % tmp)
            a('v_cndmask_b32 v%d, 0, v%d, vcc' % (tmp + 1, tmp + 1))
        a('v_bfe_u32 v%d, v0, 1, 2' % tmp)
        for r in range(4):
            a('v_cmp_eq_u32 vcc, %d, v%d' % (r, tmp))
            a('v_cndmask_b32 v%d, 0, v%d, vcc' % (m + r, tmp + 1))

    a('s_cmp_ge_u32 s2, 256')
    a('s_cbranch_scc1 L_end')
    if stamps:
        for k in range(1, 16): a('s_mov_b32 s%d, 0' % (64 + 2 * k))
    stamp(0)
    a('s_load_dwordx16 s[4:19], s[0:1], 0')
    a('s_load_dwordx4 s[20:23], s[0:1], 64')
    a('s_load_dwordx2 s[24:25], s[0:1], 80')
    a('v_lshrrev_b32 v1, 6, v0')
    a('v_and_b32 v0, 63, v0')
    a('v_readfirstlane_b32 s26, v1')
    a('s_and_b32 s28, s2, 7')
    a('s_lshr_b32 s29, s2, 6')
    if hmap == 0:
        a('s_lshl_b32 s28, s28, 2')
    else:
        a('s_lshl_b32 s29, s29, 3')
    a('s_add_u32 s28, s28, s29')
    a('s_lshr_b32 s29, s2, 3')
    if rotf == 0:
        a('s_and_b32 s59, s29, 15')
    elif rotf == 1:
        a('s_and_b32 s59, s2, 7'); a('s_lshl_b32 s59, s59, 1'); a('s_add_u32 s59, s59, s29'); a('s_and_b32 s59, s59, 15')
    elif rotf == 2:
        a('s_and_b32 s59, s28, 15')
    elif rotf == 3:
        a('s_lshl_b32 s59, s29, 1'); a('s_add_u32 s59, s59, s28'); a('s_and_b32 s59, s59, 15')
    elif rotf == 4:
        a('s_mul_i32 s59, s2, 5'); a('s_lshr_b32 s59, s59, 1'); a('s_and_b32 s59, s59, 15')
    if not rot: a('s_mov_b32 s59, 0')
    a('s_lshl_b32 s59, s59, 12')
    if sadd: a('s_add_u32 s29, s29, %d' % sadd)
    a('s_and_b32 s29, s29, 7')
    a('s_sub_u32 s30, s29, 5')
    a('s_and_b32 s27, s26, 3')
    a('s_lshr_b32 s26, s26, 2')
    a('v_and_b32 v1, 15, v0')
    a('v_lshrrev_b32 v2, 4, v0')
    a('v_lshlrev_b32 v3, 4, v0')
    a('s_waitcnt lgkmcnt(0)')
    srd(32, 's24', 's25', WS_RECORDS)
    a('s_cmp_eq_u32 s26, 1')
    a('s_cbranch_scc1 L_B')
    a('s_cmp_eq_u32 s26, 2')
    a('s_cbranch_scc1 L_CD')

    a('s_setprio %d' % prio[0])
    a('buffer_load_dword v9, off, s[32:35], 0 sc1')
    srd(36, 's4', 's5', 1280)
    a('s_cmp_lt_u32 s29, 5')
    a('s_cbranch_scc0 L_A_ffn')
    a('s_lshl_b32 s52, s28, 8')
    a('s_add_u32 s40, s10, s52')
    a('s_addc_u32 s41, s11, 0')
    a('s_sub_u32 s42, 5242880, s52')
    a('s_mov_b32 s43, 0x20000')
    a('s_mov_b32 s53, 8192')
    a('s_mov_b32 s54, 4')
    a('s_lshl_b32 s55, s29, 7')
    a('s_lshl_b32 s52, s27, 5')
    a('s_add_u32 s55, s55, s52')
    a('s_mov_b32 s56, -1')
    a('s_mov_b32 s57, 0')
    a('s_mov_b32 s31, 8')
    a('s_mul_i32 s60, s28, 5')
    a('s_add_u32 s60, s60, s29')
    a('s_lshl_b32 s60, s60, 10')
    a('s_add_u32 s60, s60, %d' % X1Q)
    a('s_branch L_A_go')
    a.label('L_A_ffn')
    a('s_cmp_ge_u32 s28, 27')
    a('s_cbranch_scc1 L_A_none')
    a('s_lshl_b32 s52, s28, 7')
    a('s_add_u32 s40, s16, s52')
    a('s_addc_u32 s41, s17, 0')
    a('s_sub_u32 s42, 2211840, s52')
    a('s_mov_b32 s43, 0x20000')
    a('s_mov_b32 s53, 3456')
    a('s_mov_b32 s54, 3')
    a('s_lshl_b32 s55, s30, 8')
    a('s_lshl_b32 s52, s27, 6')
    a('s_add_u32 s55, s55, s52')
    a('s_mov_b32 s56, 0x00ff00ff')
    a('s_mov_b32 s57, 0xff00ff00')
    a('s_mov_b32 s31, 0')
    a('s_mul_i32 s60, s28, 3')
    a('s_add_u32 s60, s60, s30')
    a('s_lshl_b32 s60, s60, 10')
    a('s_add_u32 s60, s60, %d' % X1H)
    a.label('L_A_go')
    a('v_lshrrev_b32 v14, s54, v0')
    a('s_lshl_b32 s52, 1, s54')
    a('s_sub_u32 s52, s52, 1')
    a('v_and_b32 v15, s52, v0')
    a('v_lshlrev_b32 v14, 3, v14')
    a('v_add_u32 v14, s55, v14')
    a('v_mul_lo_u32 v88, v14, s53')
    a('v_lshlrev_b32 v15, 4, v15')
    a('v_add_u32 v88, v88, v15')
    a('v_lshlrev_b32 v14, 1, v14')
    a('v_lshlrev_b32 v15, 2, v0')
    a('buffer_load_dwordx4 v[4:7], v3, s[36:39], 0 offen')
    a('buffer_load_dword v8, v15, s[36:39], 0 offen offset:1024')
    a('buffer_load_dwordx4 v[10:13], v14, s[36:39], 0 offen')
    a('s_mov_b32 s52, 0')
    for i in range(8):
        a('buffer_load_dwordx4 v[%d:%d], v88, s[40:43], s52 offen %s' % (16 + 4 * i, 19 + 4 * i, ntA))
        if i < 7: a('s_add_u32 s52, s52, s53')
    stamp(1)
    a('v_mov_b32 v89, 0')
    a('ds_write_b32 v15, v89')
    a('s_waitcnt lgkmcnt(0)')
    a('s_barrier')
    if streamonly:
        a('s_waitcnt vmcnt(0)'); stamp(2); write_stamps(0); a('s_endpgm')
    masks(80, 90, half_only_sreg='s31')
    a('s_waitcnt vmcnt(8)')
    stamp(2)
    a('v_add_u32 v9, 0x%x, v9' % TAGC)
    for k in range(4):
        a('v_lshlrev_b32 v%d, 16, v%d' % (90 + 2 * k, 4 + k))
        a('v_and_b32 v%d, 0xffff0000, v%d' % (91 + 2 * k, 4 + k))
    a('v_lshlrev_b32 v98, 16, v8')
    a('v_and_b32 v99, 0xffff0000, v8')
    a('v_add_f32 v100, v90, v91'); a('v_add_f32 v101, v92, v93'); a('v_add_f32 v102, v94, v95'); a('v_add_f32 v103, v96, v97'); a('v_add_f32 v104, v98, v99')
    a('v_add_f32 v100, v100, v101'); a('v_add_f32 v102, v102, v103'); a('v_add_f32 v100, v100, v104'); a('v_add_f32 v100, v100, v102')
    allreduce('v_add_f32', 100, 101)
    a('v_mul_f32 v100, 0x%x, v100' % INV640)
    for k in range(10):
        a('v_sub_f32 v%d, v%d, v100' % (90 + k, 90 + k))
    a('v_mul_f32 v101, v90, v90')
    a('v_mul_f32 v102, v91, v91')
    for k in range(2, 10, 2):
        a('v_fmac_f32 v101, v%d, v%d' % (90 + k, 90 + k))
        a('v_fmac_f32 v102, v%d, v%d' % (91 + k, 91 + k))
    a('v_add_f32 v101, v101, v102')
    allreduce('v_add_f32', 101, 102)
    a('v_mul_f32 v101, 0x%x, v101' % INV640)
    a('v_cvt_pk_bf16_f32 v102, v100, v101')
    a('v_lshlrev_b32 v100, 16, v102')
    a('v_and_b32 v101, 0xffff0000, v102')
    a('v_add_f32 v101, 0x%x, v101' % EPS)
    a('v_cvt_pk_bf16_f32 v101, v101, v101')
    a('v_and_b32 v101, 0xffff0000, v101')
    a('v_sqrt_f32 v101, v101')
    a('v_cvt_pk_bf16_f32 v101, v101, v101')
    a('v_and_b32 v101, 0xffff0000, v101')
    a('v_rcp_f32 v101, v101')
    for k in range(4):
        a('v_lshlrev_b32 v%d, 16, v%d' % (90 + 2 * k, 10 + k))
        a('v_and_b32 v%d, 0xffff0000, v%d' % (91 + 2 * k, 10 + k))
    for k in range(8): a('v_sub_f32 v%d, v%d, v100' % (90 + k, 90 + k))
    for k in range(8): a('v_cvt_pk_bf16_f32 v%d, v%d, v%d' % (90 + k, 90 + k, 90 + k))
    for k in range(8): a('v_and_b32 v%d, 0xffff0000, v%d' % (90 + k, 90 + k))
    for k in range(8): a('v_mul_f32 v%d, v%d, v101' % (90 + k, 90 + k))
    for k in range(8): a('v_cvt_pk_bf16_f32 v%d, v%d, v%d' % (90 + k, 90 + k, 90 + k))
    for k in range(8):
        for r in range(4):
            a('v_and_b32 v%d, v%d, v%d' % (48 + 4 * k + r, 90 + k, 80 + r))
    stamp(3)
    for i in range(8):
        a('s_waitcnt vmcnt(%d)' % (7 - i))
        a('v_mfma_f32_16x16x32_bf16 v[84:87], v[%d:%d], v[%d:%d], %s' % (48 + 4 * i, 51 + 4 * i, 16 + 4 * i, 19 + 4 * i, '0' if i == 0 else 'v[84:87]'))
    stamp(4)
    a('v_lshlrev_b32 v90, 5, v1')
    a('v_and_b32 v91, 16, v0')
    a('s_lshl_b32 s52, s27, 9')
    a('v_add3_u32 v90, v90, v91, s52')
    a('s_mov_b64 exec, s[56:57]')
    a('ds_write_b128 v90, v[84:87] offset:%d' % APART)
    a('s_mov_b64 exec, -1')
    set_flag(FLAG_A, 91, 92)
    a('s_cmp_lg_u32 s27, 0')
    a('s_cbranch_scc1 L_A_poll')
    a('v_mov_b32 v89, 0')
    lds_wait(FLAG_A, 92, 89)
    a('v_lshlrev_b32 v90, 3, v0')
    for w in range(4):
        a('ds_read_b64 v[%d:%d], v90 offset:%d' % (92 + 2 * w, 93 + 2 * w, APART + 512 * w))
    a('s_waitcnt lgkmcnt(0)')
    a('v_add_f32 v92, v92, v94'); a('v_add_f32 v93, v93, v95')
    a('v_add_f32 v96, v96, v98'); a('v_add_f32 v97, v97, v99')
    a('v_add_f32 v92, v92, v96'); a('v_add_f32 v93, v93, v97')
    a('s_cmp_lt_u32 s29, 5')
    a('s_cbranch_scc1 L_A_pub')
    a('v_mov_b32 v96, v92'); a('v_mov_b32 v97, v93')
    a('v_permlane32_swap_b32 v92, v96')
    a('v_permlane32_swap_b32 v93, v97')
    a('v_add_f32 v92, v92, v96'); a('v_add_f32 v93, v93, v97')
    a('s_mov_b32 exec_lo, -1'); a('s_mov_b32 exec_hi, 0')
    a.label('L_A_pub')
    a('v_mov_b32 v94, 0')
    a('v_mov_b32 v95, v9')
    a('v_add_u32 v90, s60, v3')
    if dual:
        a('buffer_store_dwordx4 v[92:95], v90, s[32:35], 0 offen')
        a('s_mov_b32 s52, %d' % BOFF)
        a('buffer_store_dwordx4 v[92:95], v90, s[32:35], s52 offen sc1')
    else:
        a('buffer_store_dwordx4 v[92:95], v90, s[32:35], 0 offen %s' % x1st)
    a('s_mov_b64 exec, -1')
    stamp(5)
    a('s_branch L_A_poll')
    a.label('L_A_none')
    a('v_mov_b32 v89, 0')
    a('v_lshlrev_b32 v15, 2, v0')
    a('ds_write_b32 v15, v89')
    a('s_waitcnt lgkmcnt(0)')
    a('s_barrier')
    a('s_waitcnt vmcnt(0)')
    if streamonly:
        stamp(2); write_stamps(0); a('s_endpgm')
    a('v_add_u32 v9, 0x%x, v9' % TAGC)
    a.label('L_A_poll')
    a('s_mul_i32 s52, s28, 5')
    a('s_lshl_b32 s52, s52, 10')
    a('s_lshl_b32 s53, s27, 8')
    a('s_add_u32 s52, s52, s53')
    a('s_add_u32 s52, s52, %d' % X1Q)
    a('v_lshlrev_b32 v90, 4, v1')
    a('v_add_u32 v91, s52, v90')
    a('v_lshlrev_b32 v90, 10, v2')
    a('v_add_u32 v90, v91, v90')
    a('v_add_u32 v91, 4096, v91')
    poll('A', ['buffer_load_dwordx4 v[92:95], v90, s[32:35], %s offen', 'buffer_load_dwordx4 v[96:99], v91, s[32:35], %s offen'], (95, 99), 8, 9, x1ld, nf1)
    stamp(6)
    a('v_permlane32_swap_b32 v92, v93')
    a('v_add_f32 v92, v92, v93')
    a('v_mov_b32 v93, v92')
    a('v_permlane16_swap_b32 v92, v93')
    a('v_add_f32 v92, v92, v93')
    a('v_cmp_gt_u32 vcc, 32, v0')
    a('v_cndmask_b32 v96, v97, v96, vcc')
    a('v_add_f32 v92, v92, v96')
    a('v_cvt_pk_bf16_f32 v92, v92, v92')
    a('v_lshrrev_b32 v93, 5, v0')
    a('v_lshl_add_u32 v93, v1, 1, v93')
    a('s_lshl_b32 s52, s27, 5')
    a('v_add_u32 v93, s52, v93')
    a('v_lshlrev_b32 v93, 1, v93')
    a('ds_write_b16 v93, v92 offset:%d' % QL)
    set_flag(FLAG_Q, 91, 94)
    stamp(7)
    write_stamps(0)
    a('s_endpgm')

    a.label('L_B')
    a('s_setprio %d' % prio[1])
    a('s_lshl_b32 s52, s28, 21')
    a('s_lshl_b32 s53, s29, 16')
    a('s_add_u32 s52, s52, s53')
    a('s_add_u32 s52, s52, %d' % (6144 * 256))
    a('s_add_u32 s44, s6, s52')
    a('s_addc_u32 s45, s7, 0')
    a('s_mov_b32 s46, 65536')
    a('s_mov_b32 s47, 0x20000')
    a('s_lshl_b32 s52, s27, 10')
    a('v_add_u32 v4, s52, v3')
    a('s_barrier')
    a('s_mov_b32 s52, s59')
    for i in range(16):
        a('buffer_load_dwordx4 v[%d:%d], v4, s[44:47], s52 offen %s' % (16 + 4 * i, 19 + 4 * i, ntK))
        if i < 15:
            a('s_add_u32 s52, s52, 4096')
            a('s_and_b32 s52, s52, 0xffff')
    stamp(1)
    if streamonly:
        a('s_waitcnt vmcnt(0)'); stamp(2); write_stamps(1); a('s_endpgm')
    a('v_mov_b32 v5, 0')
    lds_wait(FLAG_Q, 84, 5)
    stamp(2)
    a('v_lshlrev_b32 v6, 4, v1')
    a('ds_read_b128 v[80:83], v6 offset:%d' % QL)
    a('s_waitcnt lgkmcnt(0)')
    for i in range(16):
        a('s_waitcnt vmcnt(%d)' % (15 - i))
        k = 16 + 4 * i
        a('v_dot2_f32_bf16 v%d, v%d, v80, 0' % (84 + i, k))
        for r in range(1, 4):
            a('v_dot2_f32_bf16 v%d, v%d, v%d, v%d' % (84 + i, k + r, 80 + r, 84 + i))
    stamp(3)
    for i in range(8):
        a('v_add_f32_dpp v%d, v%d, v%d row_ror:8 row_mask:0xf bank_mask:0x3' % (84 + i, 84 + i, 84 + i))
        a('v_add_f32_dpp v%d, v%d, v%d row_ror:8 row_mask:0xf bank_mask:0xc' % (84 + i, 92 + i, 92 + i))
    for i in range(4):
        a('v_add_f32_dpp v%d, v%d, v%d row_half_mirror row_mask:0xf bank_mask:0x5' % (84 + i, 84 + i, 84 + i))
        a('v_add_f32_dpp v%d, v%d, v%d row_half_mirror row_mask:0xf bank_mask:0xa' % (84 + i, 88 + i, 88 + i))
    for i in range(4):
        a('v_add_f32_dpp v%d, v%d, v%d quad_perm:[2,3,0,1] row_mask:0xf bank_mask:0xf' % (88 + i, 84 + i, 84 + i))
    a('v_and_b32 v6, 2, v0')
    a('v_cmp_eq_u32 vcc, 0, v6')
    a('v_cndmask_b32 v84, v90, v88, vcc')
    a('v_cndmask_b32 v85, v91, v89, vcc')
    a('v_and_b32 v6, 1, v0')
    a('v_add_f32_dpp v88, v84, v84 quad_perm:[1,0,3,2] row_mask:0xf bank_mask:0xf')
    a('v_add_f32_dpp v89, v85, v85 quad_perm:[1,0,3,2] row_mask:0xf bank_mask:0xf')
    a('v_cmp_eq_u32 vcc, 0, v6')
    a('v_cndmask_b32 v84, v89, v88, vcc')
    a('v_cvt_pk_bf16_f32 v84, v84, v84')
    a('v_and_b32 v84, 0xffff0000, v84')
    a('v_mul_f32 v84, 0x%x, v84' % SCALE)
    a('v_cvt_pk_bf16_f32 v84, v84, v84')
    a('v_and_b32 v84, 0xffff0000, v84')
    a('v_mov_b32 v85, v84')
    allreduce('v_max_f32', 85, 86)
    a('v_sub_f32 v86, v84, v85')
    a('v_mul_f32 v86, 0x%x, v86' % LOG2E)
    a('v_exp_f32 v86, v86')
    a('v_cvt_pk_bf16_f32 v87, v86, v86')
    a('s_lshl_b32 s52, s27, 8')
    a('v_lshlrev_b32 v6, 2, v0')
    a('v_add_u32 v6, s52, v6')
    a('ds_write_b32 v6, v87 offset:%d' % PL)
    allreduce('v_add_f32', 86, 88)
    a('v_mov_b32 v88, v85')
    a('v_mov_b32 v89, v86')
    a('s_lshl_b32 s52, s27, 3')
    a('v_mov_b32 v6, s52')
    a('ds_write_b64 v6, v[88:89] offset:%d' % ML)
    set_flag(FLAG_P, 6, 7)
    stamp(4)
    write_stamps(1)
    a('s_endpgm')

    a.label('L_CD')
    a('s_setprio %d' % prio[2])
    a('buffer_load_dword v9, off, s[32:35], 0 sc1')
    srd(36, 's4', 's5', 1280)
    a('s_lshl_b32 s52, s2, 3')
    a('v_and_b32 v7, 1, v0')
    a('v_lshlrev_b32 v7, 2, v7')
    a('v_add_u32 v10, s52, v7')
    a('buffer_load_dword v8, v10, s[36:39], 0 offen')
    a('s_lshl_b32 s52, s28, 21')
    a('s_lshl_b32 s53, s29, 16')
    a('s_add_u32 s52, s52, s53')
    a('s_add_u32 s52, s52, %d' % (6144 * 256))
    a('s_add_u32 s44, s8, s52')
    a('s_addc_u32 s45, s9, 0')
    a('s_mov_b32 s46, 65536')
    a('s_mov_b32 s47, 0x20000')
    a('s_lshl_b32 s52, s27, 10')
    a('v_add_u32 v4, s52, v3')
    a('s_cmp_lt_u32 s29, 5')
    a('s_cbranch_scc0 L_C_ffn')
    a('s_mul_i32 s52, s28, %d' % (128 * 1280))
    a('s_lshl_b32 s53, s29, 8')
    a('s_add_u32 s52, s52, s53')
    a('s_add_u32 s40, s12, s52')
    a('s_addc_u32 s41, s13, 0')
    a('s_sub_u32 s42, 5242880, s52')
    a('s_mov_b32 s43, 0x20000')
    a('s_mul_i32 s52, s27, %d' % (32 * 1280))
    a('v_mul_u32_u24 v5, %d, v2' % (8 * 1280))
    a('v_lshlrev_b32 v6, 4, v1')
    a('v_add3_u32 v5, v5, v6, s52')
    a('v_add_u32 v6, 5120, v5')
    a('s_branch L_C_go')
    a.label('L_C_ffn')
    a('s_min_u32 s54, s28, 26')
    a('s_mul_i32 s52, s54, %d' % (64 * 1280))
    a('s_lshl_b32 s53, s30, 9')
    a('s_add_u32 s52, s52, s53')
    a('s_add_u32 s40, s18, s52')
    a('s_addc_u32 s41, s19, 0')
    a('s_sub_u32 s42, 2211840, s52')
    a('s_mov_b32 s43, 0x20000')
    a('s_mul_i32 s52, s27, %d' % (16 * 1280))
    a('v_mul_u32_u24 v5, %d, v2' % (4 * 1280))
    a('v_lshlrev_b32 v6, 4, v1')
    a('v_add3_u32 v5, v5, v6, s52')
    a('v_add_u32 v6, 256, v5')
    a('s_cmp_eq_u32 s30, 2')
    a('s_cbranch_scc0 L_C_f1')
    a('v_mov_b32 v6, 0x7ff00000')
    a.label('L_C_f1')
    a('s_cmp_ge_u32 s28, 27')
    a('s_cbranch_scc0 L_C_go')
    a('v_mov_b32 v5, 0x7ff00000')
    a('v_mov_b32 v6, 0x7ff00000')
    a.label('L_C_go')
    a('s_barrier')
    a('s_mov_b32 s52, s59')
    for i in range(16):
        a('buffer_load_dwordx4 v[%d:%d], v4, s[44:47], s52 offen %s' % (16 + 4 * i, 19 + 4 * i, ntV))
        if i < 15:
            a('s_add_u32 s52, s52, 4096')
            a('s_and_b32 s52, s52, 0xffff')
    for i in range(8):
        a('buffer_load_dwordx4 v[%d:%d], v%d, s[40:43], 0 offen offset:%d %s' % (80 + 4 * i, 83 + 4 * i, 5 if i < 4 else 6, (i % 4) * 1280, ntD))
    stamp(1)
    if streamonly:
        a('s_waitcnt vmcnt(8)'); stamp(2); a('s_waitcnt vmcnt(0)'); stamp(3); write_stamps(2); a('s_endpgm')
    masks(128, 148)
    a('v_mov_b32 v11, 0')
    lds_wait(FLAG_P, 148, 11)
    stamp(2)
    a('s_lshl_b32 s52, s27, 8')
    a('v_lshlrev_b32 v12, 6, v2')
    a('v_add_u32 v12, s52, v12')
    for k in range(4):
        a('ds_read_b128 v[%d:%d], v12 offset:%d' % (112 + 4 * k, 115 + 4 * k, PL + 16 * k))
    a('ds_read_b128 v[148:151], v11 offset:%d' % ML)
    a('ds_read_b128 v[152:155], v11 offset:%d' % (ML + 16))
    a('s_waitcnt lgkmcnt(0)')
    a('v_max_f32 v156, v148, v150'); a('v_max_f32 v157, v152, v154'); a('v_max_f32 v156, v156, v157')
    for k in range(4):
        a('v_sub_f32 v%d, v%d, v156' % (148 + 2 * k, 148 + 2 * k))
    for k in range(4):
        a('v_mul_f32 v%d, 0x%x, v%d' % (148 + 2 * k, LOG2E, 148 + 2 * k))
    for k in range(4):
        a('v_exp_f32 v%d, v%d' % (148 + 2 * k, 148 + 2 * k))
    a('v_mul_f32 v157, v148, v149')
    a('v_fmac_f32 v157, v150, v151'); a('v_fmac_f32 v157, v152, v153'); a('v_fmac_f32 v157, v154, v155')
    a('v_mov_b32 v158, v148')
    for k in range(1, 4):
        a('s_cmp_eq_u32 s27, %d' % k)
        a('s_cselect_b64 vcc, -1, 0')
        a('v_cndmask_b32 v158, v158, v%d, vcc' % (148 + 2 * k))
    def aop(i):
        b = 132 + 4 * (i & 1)
        for r in range(4):
            a('v_and_b32 v%d, v%d, v%d' % (b + r, 112 + i, 128 + r))
    aop(0)
    for i in range(16):
        if i < 15: aop(i + 1)
        a('s_waitcnt vmcnt(%d)' % (8 + 15 - i))
        b = 132 + 4 * (i & 1)
        a('v_mfma_f32_16x16x32_bf16 v[140:143], v[%d:%d], v[%d:%d], %s' % (b, b + 3, 16 + 4 * i, 19 + 4 * i, '0' if i == 0 else 'v[140:143]'))
    stamp(3)
    a('v_add_u32 v9, 0x%x, v9' % TAGC)
    a('v_lshlrev_b32 v12, 5, v1')
    a('v_and_b32 v13, 16, v0')
    a('s_lshl_b32 s52, s27, 9')
    a('v_add3_u32 v12, v12, v13, s52')
    for r in range(4):
        a('v_mul_f32 v%d, v%d, v158' % (140 + r, 140 + r))
    a('s_mov_b32 exec_lo, -1'); a('s_mov_b32 exec_hi, 0')
    a('ds_write_b128 v12, v[140:143] offset:%d' % PVP)
    a('s_mov_b64 exec, -1')
    a('s_waitcnt lgkmcnt(0)')
    a('s_barrier')
    a('s_cmp_lg_u32 s27, 0')
    a('s_cbranch_scc1 L_C_x2done')
    a('v_and_b32 v12, 31, v0')
    a('v_lshlrev_b32 v12, 4, v12')
    for w in range(4):
        a('ds_read_b128 v[%d:%d], v12 offset:%d' % (16 + 4 * w, 19 + 4 * w, PVP + 512 * w))
    a('s_lshl_b32 s52, s28, 3')
    a('s_add_u32 s52, s52, s29')
    a('s_lshl_b32 s52, s52, 10')
    a('s_add_u32 s52, s52, %d' % X2)
    a('v_add_u32 v13, s52, v3')
    a('v_cmp_gt_u32 vcc, 32, v0')
    a('s_waitcnt lgkmcnt(0)')
    for r in range(4):
        a('v_add_f32 v%d, v%d, v%d' % (16 + r, 16 + r, 20 + r))
        a('v_add_f32 v%d, v%d, v%d' % (24 + r, 24 + r, 28 + r))
    for r in range(4):
        a('v_add_f32 v%d, v%d, v%d' % (16 + r, 16 + r, 24 + r))
    a('v_cndmask_b32 v20, v19, v16, vcc')
    a('v_cndmask_b32 v21, v156, v17, vcc')
    a('v_cndmask_b32 v22, v157, v18, vcc')
    a('v_mov_b32 v23, v9')
    if dual:
        a('buffer_store_dwordx4 v[20:23], v13, s[32:35], 0 offen')
        a('s_mov_b32 s52, %d' % BOFF)
        a('buffer_store_dwordx4 v[20:23], v13, s[32:35], s52 offen sc1')
    else:
        a('buffer_store_dwordx4 v[20:23], v13, s[32:35], 0 offen %s' % x2st)
    a.label('L_C_x2done')
    stamp(4)
    a('s_cmp_lt_u32 s29, 5')
    a('s_cbranch_scc0 L_D_ffn')
    a('v_and_b32 v12, 7, v0')
    a('v_lshlrev_b32 v12, 10, v12')
    a('v_lshrrev_b32 v13, 3, v0')
    a('v_lshlrev_b32 v13, 4, v13')
    a('s_lshl_b32 s52, s28, 13')
    a('s_lshl_b32 s53, s27, 7')
    a('s_add_u32 s52, s52, s53')
    a('s_add_u32 s52, s52, %d' % X2)
    a('v_add3_u32 v12, v12, v13, s52')
    poll('D', ['buffer_load_dwordx4 v[16:19], v12, s[32:35], %s offen', 'buffer_load_dwordx4 v[20:23], v12, s[32:35], %s offen offset:512'], (19, 23), 10, 11, x2ld, nf2)
    stamp(5)
    def red8(op, v):
        return ['%s_dpp v%d, v%d, v%d row_half_mirror row_mask:0xf bank_mask:0xf' % (op, v, v, v),
                '%s_dpp v%d, v%d, v%d quad_perm:[1,0,3,2] row_mask:0xf bank_mask:0xf' % (op, v, v, v),
                '%s_dpp v%d, v%d, v%d quad_perm:[2,3,0,1] row_mask:0xf bank_mask:0xf' % (op, v, v, v)]
    a('v_mov_b32 v24, v21')
    for s_ in red8('v_max_f32', 24): a(s_)
    a('v_sub_f32 v21, v21, v24')
    a('v_mul_f32 v21, 0x%x, v21' % LOG2E)
    a('v_exp_f32 v21, v21')
    vals = (22, 16, 17, 18, 20)
    for v in vals: a('v_mul_f32 v%d, v%d, v21' % (v, v))
    for st in range(3):
        for v in vals: a(red8('v_add_f32', v)[st])
    a('v_rcp_f32 v22, v22')
    for v in vals[1:]: a('v_mul_f32 v%d, v%d, v22' % (v, v))
    for v in vals[1:]: a('v_cvt_pk_bf16_f32 v%d, v%d, v%d' % (v, v, v))
    ov = (16, 17, 18, 20)
    for i in range(8):
        for r in range(4):
            if i < 4: a('v_and_b32 v%d, v%d, v%d' % (24 + 4 * i + r, ov[i], 128 + r))
            else: a('v_and_b32_dpp v%d, v%d, v%d row_ror:8 row_mask:0xf bank_mask:0xf' % (24 + 4 * i + r, ov[i - 4], 128 + r))
    for i in range(8):
        a('v_mfma_f32_16x16x32_bf16 v[140:143], v[%d:%d], v[%d:%d], %s' % (24 + 4 * i, 27 + 4 * i, 80 + 4 * i, 83 + 4 * i, '0' if i == 0 else 'v[140:143]'))
    a('s_lshl_b32 s60, s29, 5')
    a('s_add_u32 s60, s60, s28')
    a('s_lshl_b32 s60, s60, 10')
    a('s_add_u32 s60, s60, %d' % X3A)
    a('s_mov_b32 s61, 1')
    a('s_branch L_D_red')
    a.label('L_D_ffn')
    a('s_cmp_ge_u32 s28, 27')
    a('s_cbranch_scc1 L_final')
    a('v_and_b32 v12, 3, v0')
    a('v_min_u32 v13, 2, v12')
    a('v_lshlrev_b32 v13, 10, v13')
    a('v_lshlrev_b32 v14, 5, v2')
    a('s_mul_i32 s52, s28, 3072')
    a('s_lshl_b32 s53, s27, 7')
    a('s_add_u32 s52, s52, s53')
    a('s_add_u32 s52, s52, %d' % X1H)
    a('v_add3_u32 v13, v13, v14, s52')
    poll('F', ['buffer_load_dwordx4 v[16:19], v13, s[32:35], %s offen', 'buffer_load_dwordx4 v[20:23], v13, s[32:35], %s offen offset:16'], (19, 23), 10, 11, x1ld, nfh)
    stamp(5)
    a('v_cmp_gt_u32 vcc, 3, v12')
    hv = (16, 17, 20, 21)
    for v in hv: a('v_cndmask_b32 v%d, 0, v%d, vcc' % (v, v))
    for v in hv: a('v_add_f32_dpp v%d, v%d, v%d quad_perm:[1,0,3,2] row_mask:0xf bank_mask:0xf' % (v, v, v))
    for v in hv: a('v_add_f32_dpp v%d, v%d, v%d quad_perm:[2,3,0,1] row_mask:0xf bank_mask:0xf' % (v, v, v))
    for v in hv: a('v_cvt_pk_bf16_f32 v%d, v%d, v%d' % (v, v, v))
    for v in hv: a('v_and_b32 v%d, 0xffff0000, v%d' % (v, v))
    for k, v in enumerate(hv): a('v_mul_f32 v%d, 0x%x, v%d' % (24 + k, LOG2E ^ 0x80000000, v))
    for k in range(4): a('v_exp_f32 v%d, v%d' % (24 + k, 24 + k))
    for k in range(4): a('v_add_f32 v%d, 1.0, v%d' % (24 + k, 24 + k))
    for k in range(4): a('v_rcp_f32 v%d, v%d' % (24 + k, 24 + k))
    for k, v in enumerate(hv): a('v_mul_f32 v%d, v%d, v%d' % (v, v, 24 + k))
    for v in hv: a('v_cvt_pk_bf16_f32 v%d, v%d, v%d' % (v, v, v))
    for i in range(4):
        for r in range(4):
            a('v_and_b32 v%d, v%d, v%d' % (24 + 4 * i + r, hv[i], 128 + r))
    for i in range(4):
        a('v_mfma_f32_16x16x32_bf16 v[140:143], v[%d:%d], v[%d:%d], %s' % (24 + 4 * i, 27 + 4 * i, 80 + 4 * i, 83 + 4 * i, '0' if i == 0 else 'v[140:143]'))
        a('v_mfma_f32_16x16x32_bf16 v[144:147], v[%d:%d], v[%d:%d], %s' % (24 + 4 * i, 27 + 4 * i, 96 + 4 * i, 99 + 4 * i, '0' if i == 0 else 'v[144:147]'))
    a('s_lshl_b32 s60, s30, 6')
    a('s_add_u32 s60, s60, s28')
    a('s_lshl_b32 s60, s60, 10')
    a('s_add_u32 s60, s60, %d' % X3F)
    a('s_cmp_eq_u32 s30, 2')
    a('s_cselect_b32 s61, 1, 2')
    a.label('L_D_red')
    a('v_lshlrev_b32 v12, 5, v1')
    a('v_and_b32 v13, 16, v0')
    a('s_lshl_b32 s52, s27, 10')
    a('v_add3_u32 v12, v12, v13, s52')
    a('s_nop 7')
    a('s_mov_b32 exec_lo, -1'); a('s_mov_b32 exec_hi, 0')
    a('ds_write_b128 v12, v[140:143] offset:%d' % FIN)
    a('s_cmp_eq_u32 s61, 2')
    a('s_cbranch_scc0 L_D_w1')
    a('ds_write_b128 v12, v[144:147] offset:%d' % (FIN + 512))
    a.label('L_D_w1')
    a('s_mov_b64 exec, -1')
    a('s_waitcnt lgkmcnt(0)')
    a('s_barrier')
    stamp(6)
    a('s_and_b32 s52, s27, 1')
    a('s_cmp_lg_u32 s52, 0')
    a('s_cbranch_scc1 L_final')
    a('s_lshr_b32 s52, s27, 1')
    a('s_cmp_ge_u32 s52, s61')
    a('s_cbranch_scc1 L_final')
    a('s_lshl_b32 s53, s52, 9')
    a('v_lshlrev_b32 v12, 3, v0')
    a('v_add_u32 v12, s53, v12')
    for w in range(4):
        a('ds_read_b64 v[%d:%d], v12 offset:%d' % (16 + 2 * w, 17 + 2 * w, FIN + 1024 * w))
    a('s_lshl_b32 s53, s52, 15')
    a('s_add_u32 s53, s53, s60')
    a('v_add_u32 v13, s53, v3')
    a('s_waitcnt lgkmcnt(0)')
    a('v_add_f32 v16, v16, v18'); a('v_add_f32 v17, v17, v19')
    a('v_add_f32 v20, v20, v22'); a('v_add_f32 v21, v21, v23')
    a('v_add_f32 v16, v16, v20'); a('v_add_f32 v17, v17, v21')
    a('v_mov_b32 v18, 0')
    a('v_mov_b32 v19, v9')
    a('buffer_store_dwordx4 v[16:19], v13, s[32:35], 0 offen %s' % x3st)
    stamp(7)
    a.label('L_final')
    a('s_cmp_eq_u32 s27, 1')
    a('s_cbranch_scc0 L_CD_end')
    a('s_cmp_lt_u32 s2, 160')
    a('s_cbranch_scc0 L_CD_end')
    a('s_lshr_b32 s52, s2, 5')
    a('s_and_b32 s53, s2, 31')
    a('s_lshl_b32 s52, s52, 15')
    a('s_lshl_b32 s53, s53, 5')
    a('s_add_u32 s52, s52, s53')
    a('v_lshrrev_b32 v12, 1, v0')
    a('v_and_b32 v13, 1, v0')
    a('v_lshlrev_b32 v13, 4, v13')
    a('v_add_u32 v13, s52, v13')
    a('v_min_u32 v14, 26, v12')
    a('v_lshlrev_b32 v14, 10, v14')
    a('v_lshlrev_b32 v15, 10, v12')
    a('v_add_u32 v14, v14, v13')
    a('v_add_u32 v15, v15, v13')
    a('v_add_u32 v14, 0x%x, v14' % X3F)
    a('v_add_u32 v15, 0x%x, v15' % X3A)
    poll('R', ['buffer_load_dwordx4 v[16:19], v15, s[32:35], %s offen', 'buffer_load_dwordx4 v[20:23], v14, s[32:35], %s offen'], (19, 23), 12, 13, x3ld, 0)
    stamp(8)
    a('v_cmp_gt_u32 vcc, 27, v12')
    a('v_cndmask_b32 v20, 0, v20, vcc')
    a('v_cndmask_b32 v21, 0, v21, vcc')
    fv = (16, 17, 20, 21)
    for r in (2, 4, 8):
        for v in fv: a('v_add_f32_dpp v%d, v%d, v%d row_ror:%d row_mask:0xf bank_mask:0xf' % (v, v, v, r))
    for k, v in enumerate(fv): a('v_mov_b32 v%d, v%d' % (24 + k, v))
    for k, v in enumerate(fv): a('v_permlane16_swap_b32 v%d, v%d' % (v, 24 + k))
    for k, v in enumerate(fv): a('v_add_f32 v%d, v%d, v%d' % (v, v, 24 + k))
    for k, v in enumerate(fv): a('v_mov_b32 v%d, v%d' % (24 + k, v))
    for k, v in enumerate(fv): a('v_permlane32_swap_b32 v%d, v%d' % (v, 24 + k))
    for k, v in enumerate(fv): a('v_add_f32 v%d, v%d, v%d' % (v, v, 24 + k))
    a('v_cvt_pk_bf16_f32 v16, v16, v17')
    a('v_cvt_pk_bf16_f32 v20, v20, v21')
    a('v_lshlrev_b32 v24, 16, v8'); a('v_and_b32 v25, 0xffff0000, v8')
    a('v_lshlrev_b32 v26, 16, v16'); a('v_and_b32 v27, 0xffff0000, v16')
    a('v_add_f32 v24, v24, v26'); a('v_add_f32 v25, v25, v27')
    a('v_cvt_pk_bf16_f32 v24, v24, v25')
    a('v_lshlrev_b32 v26, 16, v20'); a('v_and_b32 v27, 0xffff0000, v20')
    a('v_lshlrev_b32 v28, 16, v24'); a('v_and_b32 v29, 0xffff0000, v24')
    a('v_add_f32 v26, v26, v28'); a('v_add_f32 v27, v27, v29')
    a('v_cvt_pk_bf16_f32 v26, v26, v27')
    srd(48, 's20', 's21', 1280)
    a('s_mov_b64 exec, 3')
    a('buffer_store_dword v26, v10, s[48:51], 0 offen')
    a('s_cmp_eq_u32 s2, 0')
    a('s_cbranch_scc0 L_CD_end')
    a('s_mov_b64 exec, 1')
    a('buffer_store_dword v9, off, s[32:35], 0 sc1')
    a.label('L_CD_end')
    stamp(9)
    write_stamps(2)
    a.label('L_end')
    a('s_endpgm')
    lines = hazard.fix(a.lines)
    return wrap('\n'.join(lines) + '\n', 256, 768, LDS_BYTES, 160, sgpr=100)

if __name__ == '__main__':
    out = sys.argv[1] if len(sys.argv) > 1 else 'k.s'
    kw = {}
    for arg in sys.argv[2:]:
        k, v = arg.split('=')
        kw[k] = eval(v)
    open(out, 'w').write(gen(**kw))
```

```python
import sys
from asmlib import *
import hazard

FLAG_A, FLAG_Q, FLAG_P, FLAG_I = 0, 16, 32, 48
QL, ML, PL, APART, PVP, FIN = 64, 320, 512, 2048, 4096, 6144
LDS_BYTES = 10240
HINT1 = 0x400
X1Q, X1H, X2, X3A, X3F, STAMP = 0x1000, 0x30000, 0x50000, 0x90000, 0xC0000, 0x200000
BOFF = 0x100000
WS_RECORDS = 0x400000
TAGC = 0x9E3779B1
LOG2E = 0x3FB8AA3B
SCALE = 0x3DB504F3
INV640 = 0x3ACCCCCD
EPS = 0x3727C5AC
SPIN_LDS = 1 << 20
SPIN_MEM = 1 << 16

def gen(stamps=False, ntA='nt', ntK='nt', ntV='nt', ntD='nt', prio=(3, 2, 0), rot=True, st_flags='sc1', ld_flags='sc1', pollsleep=0, dbgtime=False, dbgwg=0, streamonly=False, rotf=0, x1st=None, x2st=None, x3st=None, x1ld=None, x2ld=None, x3ld=None, hmap=0, sadd=0, ablate='', pbar=False, dfirst=False, pre1=False, pre2='', pre3='', rpoll={1: 0}, rsleep=0, x2pipe=0, x2wait=None, x2d=2, bpoll=False, hint=0, wB=0, wB0=0, wC=0, gateC=False, ilv=False, dual=True, nf1=6, nf2=16, nfh=4):
    x1st = st_flags if x1st is None else x1st; x2st = st_flags if x2st is None else x2st; x3st = st_flags if x3st is None else x3st
    x1ld = ld_flags if x1ld is None else x1ld; x2ld = ld_flags if x2ld is None else x2ld; x3ld = ld_flags if x3ld is None else x3ld
    a = Asm()
    stamp_idx = [0]
    if dbgtime: stamps = True
    def stamp(k):
        if stamps: a('s_memrealtime s[%d:%d]' % (64 + 2 * k, 65 + 2 * k))
    def srd(r, lo, hi, rec):
        a('s_mov_b32 s%d, %s' % (r, lo)); a('s_mov_b32 s%d, %s' % (r + 1, hi))
        a('s_mov_b32 s%d, %s' % (r + 2, rec)); a('s_mov_b32 s%d, 0x20000' % (r + 3))
    def write_dbg(role):
        slots = {0: {0: 0, 2: 1, 4: 2, 5: 3, 6: 4}, 1: {1: 5, 2: 6, 3: 7, 4: 8}, 2: {1: 9, 2: 10, 3: 11, 5: 12, 6: 13, 8: 14, 9: 15}}[role]
        L = a.newlabel('L_nodbg')
        a('s_cmp_eq_u32 s2, %d' % dbgwg)
        a('s_cbranch_scc0 %s' % L)
        a('s_cmp_eq_u32 s27, %d' % (1 if role == 2 else 0))
        a('s_cbranch_scc0 %s' % L)
        a('s_waitcnt lgkmcnt(0)')
        a('s_mov_b64 exec, -1')
        a('v_mov_b32 v1, 0')
        mask = 0
        for k, sl in slots.items():
            a('v_writelane_b32 v1, s%d, %d' % (64 + 2 * k, sl)); mask |= 1 << sl
        srd(48, 's22', 's23', 256)
        a('v_lshlrev_b32 v2, 2, v0')
        a('s_mov_b64 exec, 0x%x' % mask)
        a('buffer_store_dword v1, v2, s[48:51], 0 offen')
        a('s_waitcnt vmcnt(0)')
        a.label(L)
    def write_stamps(role=0):
        if not stamps: return
        if dbgtime: return write_dbg(role)
        a('s_waitcnt lgkmcnt(0)')
        a('s_mov_b64 exec, -1')
        a('v_mov_b32 v1, 0')
        for k in range(16):
            a('v_writelane_b32 v1, s%d, %d' % (64 + 2 * k, k))
        a('s_lshl_b32 s52, s2, 4')
        a('s_lshl_b32 s53, s26, 2')
        a('s_add_u32 s52, s52, s53')
        a('s_add_u32 s52, s52, s27')
        a('s_lshl_b32 s52, s52, 6')
        a('s_add_u32 s52, s52, %d' % STAMP)
        a('v_lshlrev_b32 v2, 2, v0')
        a('v_add_u32 v2, s52, v2')
        a('s_mov_b64 exec, 0xffff')
        a('buffer_store_dword v1, v2, s[32:35], 0 offen')
        a('s_waitcnt vmcnt(0)')
    def lds_wait(off, tmp, zero):
        L = a.newlabel('L_lw'); D = a.newlabel('L_lwd')
        a('s_mov_b32 s58, %d' % SPIN_LDS)
        a.label(L)
        a('ds_read_b128 v[%d:%d], v%d offset:%d' % (tmp, tmp + 3, zero, off))
        a('s_waitcnt lgkmcnt(0)')
        a('v_and_b32 v%d, v%d, v%d' % (tmp, tmp, tmp + 1))
        a('v_and_b32 v%d, v%d, v%d' % (tmp + 2, tmp + 2, tmp + 3))
        a('v_and_b32 v%d, v%d, v%d' % (tmp, tmp, tmp + 2))
        a('v_cmp_ne_u32 vcc, 0, v%d' % tmp)
        a('s_cbranch_vccnz %s' % D)
        a('s_sub_u32 s58, s58, 1')
        a('s_cbranch_scc1 %s' % D)
        a('s_sleep 1')
        a('s_branch %s' % L)
        a.label(D)
    def poll(name, loads, checks, st_first=None, st_cnt=None, fl='', nfast=0, between=None):
        L = 'L_%s_pl' % name; D = 'L_%s_pd' % name
        a('s_mov_b32 s58, 0')
        a('s_mov_b32 s61, %s' % ('0' if nfast or not dual else '0'))
        if dual and not nfast and name != 'R': a('s_mov_b32 s61, %d' % BOFF)
        if between is not None:
            for ld in loads: a((ld % 's61') + ' ' + fl)
            between()
            a('s_branch %s_w' % L)
        a.label(L)
        for ld in loads: a((ld % 's61') + ' ' + fl)
        a.label(L + '_w')
        a('s_waitcnt vmcnt(0)')
        if stamps and st_first is not None:
            X = a.newlabel('L_nf')
            a('s_cmp_eq_u32 s58, 0')
            a('s_cbranch_scc0 %s' % X)
            stamp(st_first)
            a.label(X)
        a('v_cmp_ne_u32 vcc, v%d, v9' % checks[0])
        a('v_cmp_ne_u32 s[52:53], v%d, v9' % checks[1])
        a('s_or_b64 vcc, vcc, s[52:53]')
        a('s_cbranch_vccz %s' % D)
        a('s_add_u32 s58, s58, 1')
        if dual and nfast:
            a('s_cmp_ge_u32 s58, %d' % nfast)
            a('s_cselect_b32 s61, %d, 0' % BOFF)
        if pollsleep: a('s_sleep %d' % pollsleep)
        if name == 'R' and rsleep: a('s_sleep %d' % rsleep)
        a('s_cmp_lt_u32 s58, %d' % SPIN_MEM)
        a('s_cbranch_scc1 %s' % L)
        a.label(D)
        if stamps and st_cnt is not None:
            a('s_add_u32 s%d, s58, 1' % (64 + 2 * st_cnt))
    def mkT():
        a('v_add_u32 v9, 0x%x, v9' % TAGC)
        a('v_or_b32 v9, 1, v9')
    def set_flag(off, zero, one):
        a('s_lshl_b32 s52, s27, 2')
        a('v_mov_b32 v%d, s52' % zero)
        a('v_mov_b32 v%d, 1' % one)
        a('ds_write_b32 v%d, v%d offset:%d' % (zero, one, off))
    def allreduce(op, v, t):
        for r in (8, 4, 2, 1):
            a('%s_dpp v%d, v%d, v%d row_ror:%d row_mask:0xf bank_mask:0xf' % (op, v, v, v, r))
        a('v_mov_b32 v%d, v%d' % (t, v))
        a('v_permlane16_swap_b32 v%d, v%d' % (v, t))
        a('%s v%d, v%d, v%d' % (op, v, v, t))
        a('v_mov_b32 v%d, v%d' % (t, v))
        a('v_permlane32_swap_b32 v%d, v%d' % (v, t))
        a('%s v%d, v%d, v%d' % (op, v, v, t))
    def masks(m, tmp, half_only_sreg=None, half_only=True):
        a('v_and_b32 v%d, 1, v0' % tmp)
        a('v_mov_b32 v%d, 0xffff' % (tmp + 1))
        a('v_lshlrev_b32 v%d, 4, v%d' % (tmp, tmp))
        a('v_lshlrev_b32 v%d, v%d, v%d' % (tmp + 1, tmp, tmp + 1))
        if half_only_sreg is not None:
            a('v_and_b32 v%d, %s, v0' % (tmp, half_only_sreg))
            a('v_cmp_eq_u32 vcc, 0, v%d' % tmp)
            a('v_cndmask_b32 v%d, 0, v%d, vcc' % (tmp + 1, tmp + 1))
        elif half_only:
            a('v_and_b32 v%d, 8, v0' % tmp)
            a('v_cmp_eq_u32 vcc, 0, v%d' % tmp)
            a('v_cndmask_b32 v%d, 0, v%d, vcc' % (tmp + 1, tmp + 1))
        a('v_bfe_u32 v%d, v0, 1, 2' % tmp)
        for r in range(4):
            a('v_cmp_eq_u32 vcc, %d, v%d' % (r, tmp))
            a('v_cndmask_b32 v%d, 0, v%d, vcc' % (m + r, tmp + 1))

    a('s_cmp_ge_u32 s2, 256')
    a('s_cbranch_scc1 L_end')
    if stamps:
        for k in range(1, 16): a('s_mov_b32 s%d, 0' % (64 + 2 * k))
    stamp(0)
    a('s_load_dwordx16 s[4:19], s[0:1], 0')
    a('s_load_dwordx4 s[20:23], s[0:1], 64')
    a('s_load_dwordx2 s[24:25], s[0:1], 80')
    a('v_lshrrev_b32 v1, 6, v0')
    a('v_and_b32 v0, 63, v0')
    a('v_readfirstlane_b32 s26, v1')
    a('s_and_b32 s28, s2, 7')
    a('s_lshr_b32 s29, s2, 6')
    if hmap == 0:
        a('s_lshl_b32 s28, s28, 2')
    else:
        a('s_lshl_b32 s29, s29, 3')
    a('s_add_u32 s28, s28, s29')
    a('s_lshr_b32 s29, s2, 3')
    if rotf == 0:
        a('s_and_b32 s59, s29, 15')
    elif rotf == 1:
        a('s_and_b32 s59, s2, 7'); a('s_lshl_b32 s59, s59, 1'); a('s_add_u32 s59, s59, s29'); a('s_and_b32 s59, s59, 15')
    elif rotf == 2:
        a('s_and_b32 s59, s28, 15')
    elif rotf == 3:
        a('s_lshl_b32 s59, s29, 1'); a('s_add_u32 s59, s59, s28'); a('s_and_b32 s59, s59, 15')
    elif rotf == 4:
        a('s_mul_i32 s59, s2, 5'); a('s_lshr_b32 s59, s59, 1'); a('s_and_b32 s59, s59, 15')
    if not rot: a('s_mov_b32 s59, 0')
    a('s_lshl_b32 s59, s59, 12')
    if sadd: a('s_add_u32 s29, s29, %d' % sadd)
    a('s_and_b32 s29, s29, 7')
    a('s_sub_u32 s30, s29, 5')
    a('s_and_b32 s27, s26, 3')
    a('s_lshr_b32 s26, s26, 2')
    a('v_and_b32 v1, 15, v0')
    a('v_lshrrev_b32 v2, 4, v0')
    a('v_lshlrev_b32 v3, 4, v0')
    a('s_waitcnt lgkmcnt(0)')
    srd(32, 's24', 's25', WS_RECORDS)
    a('s_cmp_eq_u32 s26, 1')
    a('s_cbranch_scc1 L_B')
    a('s_cmp_eq_u32 s26, 2')
    a('s_cbranch_scc1 L_CD')

    a('s_setprio %d' % prio[0])
    a('buffer_load_dword v9, off, s[32:35], 0 sc1')
    srd(36, 's4', 's5', 1280)
    a('s_cmp_lt_u32 s29, 5')
    a('s_cbranch_scc0 L_A_ffn')
    a('s_lshl_b32 s52, s28, 8')
    a('s_add_u32 s40, s10, s52')
    a('s_addc_u32 s41, s11, 0')
    a('s_sub_u32 s42, 5242880, s52')
    a('s_mov_b32 s43, 0x20000')
    a('s_mov_b32 s53, 8192')
    a('s_mov_b32 s54, 4')
    a('s_lshl_b32 s55, s29, 7')
    a('s_lshl_b32 s52, s27, 5')
    a('s_add_u32 s55, s55, s52')
    a('s_mov_b32 s56, -1')
    a('s_mov_b32 s57, 0')
    a('s_mov_b32 s31, 8')
    a('s_mul_i32 s60, s28, 5')
    a('s_add_u32 s60, s60, s29')
    a('s_lshl_b32 s60, s60, 10')
    a('s_add_u32 s60, s60, %d' % X1Q)
    a('s_branch L_A_go')
    a.label('L_A_ffn')
    a('s_cmp_ge_u32 s28, 27')
    a('s_cbranch_scc1 L_A_none')
    a('s_lshl_b32 s52, s28, 7')
    a('s_add_u32 s40, s16, s52')
    a('s_addc_u32 s41, s17, 0')
    a('s_sub_u32 s42, 2211840, s52')
    a('s_mov_b32 s43, 0x20000')
    a('s_mov_b32 s53, 3456')
    a('s_mov_b32 s54, 3')
    a('s_lshl_b32 s55, s30, 8')
    a('s_lshl_b32 s52, s27, 6')
    a('s_add_u32 s55, s55, s52')
    a('s_mov_b32 s56, 0x00ff00ff')
    a('s_mov_b32 s57, 0xff00ff00')
    a('s_mov_b32 s31, 0')
    a('s_mul_i32 s60, s28, 3')
    a('s_add_u32 s60, s60, s30')
    a('s_lshl_b32 s60, s60, 10')
    a('s_add_u32 s60, s60, %d' % X1H)
    a.label('L_A_go')
    a('v_lshrrev_b32 v14, s54, v0')
    a('s_lshl_b32 s52, 1, s54')
    a('s_sub_u32 s52, s52, 1')
    a('v_and_b32 v15, s52, v0')
    a('v_lshlrev_b32 v14, 3, v14')
    a('v_add_u32 v14, s55, v14')
    a('v_mul_lo_u32 v88, v14, s53')
    a('v_lshlrev_b32 v15, 4, v15')
    a('v_add_u32 v88, v88, v15')
    a('v_lshlrev_b32 v14, 1, v14')
    a('v_lshlrev_b32 v15, 2, v0')
    if pre1:
        X = a.newlabel('L_p1')
        a('s_cmp_lg_u32 s27, 0'); a('s_cbranch_scc1 %s' % X)
        for r in range(92, 96): a('v_mov_b32 v%d, 0' % r)
        a('v_add_u32 v90, s60, v3')
        a('buffer_store_dwordx4 v[92:95], v90, s[32:35], 0 offen')
        a.label(X)
    a('buffer_load_dwordx4 v[4:7], v3, s[36:39], 0 offen')
    a('buffer_load_dword v8, v15, s[36:39], 0 offen offset:1024')
    a('buffer_load_dwordx4 v[10:13], v14, s[36:39], 0 offen')
    a('s_mov_b32 s52, 0')
    for i in range(8):
        a('buffer_load_dwordx4 v[%d:%d], v88, s[40:43], s52 offen %s' % (16 + 4 * i, 19 + 4 * i, ntA))
        if i < 7: a('s_add_u32 s52, s52, s53')
    stamp(1)
    a('v_mov_b32 v89, 0')
    a('ds_write_b32 v15, v89')
    a('s_waitcnt lgkmcnt(0)')
    a('s_barrier')
    if streamonly:
        a('s_waitcnt vmcnt(0)'); stamp(2); write_stamps(0); a('s_endpgm')
    if 'noA' in ablate:
        a('s_waitcnt vmcnt(0)'); stamp(2); write_stamps(0); a('s_endpgm')
    masks(80, 90, half_only_sreg='s31')
    a('s_waitcnt vmcnt(8)')
    stamp(2)
    mkT()
    for k in range(4):
        a('v_lshlrev_b32 v%d, 16, v%d' % (90 + 2 * k, 4 + k))
        a('v_and_b32 v%d, 0xffff0000, v%d' % (91 + 2 * k, 4 + k))
    a('v_lshlrev_b32 v98, 16, v8')
    a('v_and_b32 v99, 0xffff0000, v8')
    a('v_add_f32 v100, v90, v91'); a('v_add_f32 v101, v92, v93'); a('v_add_f32 v102, v94, v95'); a('v_add_f32 v103, v96, v97'); a('v_add_f32 v104, v98, v99')
    a('v_add_f32 v100, v100, v101'); a('v_add_f32 v102, v102, v103'); a('v_add_f32 v100, v100, v104'); a('v_add_f32 v100, v100, v102')
    allreduce('v_add_f32', 100, 101)
    a('v_mul_f32 v100, 0x%x, v100' % INV640)
    for k in range(10):
        a('v_sub_f32 v%d, v%d, v100' % (90 + k, 90 + k))
    a('v_mul_f32 v101, v90, v90')
    a('v_mul_f32 v102, v91, v91')
    for k in range(2, 10, 2):
        a('v_fmac_f32 v101, v%d, v%d' % (90 + k, 90 + k))
        a('v_fmac_f32 v102, v%d, v%d' % (91 + k, 91 + k))
    a('v_add_f32 v101, v101, v102')
    allreduce('v_add_f32', 101, 102)
    a('v_mul_f32 v101, 0x%x, v101' % INV640)
    a('v_cvt_pk_bf16_f32 v102, v100, v101')
    a('v_lshlrev_b32 v100, 16, v102')
    a('v_and_b32 v101, 0xffff0000, v102')
    a('v_add_f32 v101, 0x%x, v101' % EPS)
    a('v_cvt_pk_bf16_f32 v101, v101, v101')
    a('v_and_b32 v101, 0xffff0000, v101')
    a('v_sqrt_f32 v101, v101')
    a('v_cvt_pk_bf16_f32 v101, v101, v101')
    a('v_and_b32 v101, 0xffff0000, v101')
    a('v_rcp_f32 v101, v101')
    for k in range(4):
        a('v_lshlrev_b32 v%d, 16, v%d' % (90 + 2 * k, 10 + k))
        a('v_and_b32 v%d, 0xffff0000, v%d' % (91 + 2 * k, 10 + k))
    for k in range(8): a('v_sub_f32 v%d, v%d, v100' % (90 + k, 90 + k))
    for k in range(8): a('v_cvt_pk_bf16_f32 v%d, v%d, v%d' % (90 + k, 90 + k, 90 + k))
    for k in range(8): a('v_and_b32 v%d, 0xffff0000, v%d' % (90 + k, 90 + k))
    for k in range(8): a('v_mul_f32 v%d, v%d, v101' % (90 + k, 90 + k))
    for k in range(8): a('v_cvt_pk_bf16_f32 v%d, v%d, v%d' % (90 + k, 90 + k, 90 + k))
    for k in range(8):
        for r in range(4):
            a('v_and_b32 v%d, v%d, v%d' % (48 + 4 * k + r, 90 + k, 80 + r))
    stamp(3)
    for i in range(8):
        a('s_waitcnt vmcnt(%d)' % (7 - i))
        a('v_mfma_f32_16x16x32_bf16 v[84:87], v[%d:%d], v[%d:%d], %s' % (48 + 4 * i, 51 + 4 * i, 16 + 4 * i, 19 + 4 * i, '0' if i == 0 else 'v[84:87]'))
    stamp(4)
    a('v_lshlrev_b32 v90, 5, v1')
    a('v_and_b32 v91, 16, v0')
    a('s_lshl_b32 s52, s27, 9')
    a('v_add3_u32 v90, v90, v91, s52')
    a('s_mov_b64 exec, s[56:57]')
    a('ds_write_b128 v90, v[84:87] offset:%d' % APART)
    a('s_mov_b64 exec, -1')
    set_flag(FLAG_A, 91, 92)
    a('s_cmp_lg_u32 s27, 0')
    a('s_cbranch_scc1 L_A_poll')
    a('v_mov_b32 v89, 0')
    lds_wait(FLAG_A, 92, 89)
    a('v_lshlrev_b32 v90, 3, v0')
    for w in range(4):
        a('ds_read_b64 v[%d:%d], v90 offset:%d' % (92 + 2 * w, 93 + 2 * w, APART + 512 * w))
    a('s_waitcnt lgkmcnt(0)')
    a('v_add_f32 v92, v92, v94'); a('v_add_f32 v93, v93, v95')
    a('v_add_f32 v96, v96, v98'); a('v_add_f32 v97, v97, v99')
    a('v_add_f32 v92, v92, v96'); a('v_add_f32 v93, v93, v97')
    a('s_cmp_lt_u32 s29, 5')
    a('s_cbranch_scc1 L_A_pub')
    a('v_mov_b32 v96, v92'); a('v_mov_b32 v97, v93')
    a('v_permlane32_swap_b32 v92, v96')
    a('v_permlane32_swap_b32 v93, v97')
    a('v_add_f32 v92, v92, v96'); a('v_add_f32 v93, v93, v97')
    a('s_mov_b32 exec_lo, -1'); a('s_mov_b32 exec_hi, 0')
    a.label('L_A_pub')
    a('v_mov_b32 v94, 0')
    a('v_mov_b32 v95, v9')
    a('v_add_u32 v90, s60, v3')
    if 'nopub1' in ablate:
        pass
    elif dual:
        a('buffer_store_dwordx4 v[92:95], v90, s[32:35], 0 offen')
        a('s_mov_b32 s52, %d' % BOFF)
        a('buffer_store_dwordx4 v[92:95], v90, s[32:35], s52 offen sc1')
    else:
        a('buffer_store_dwordx4 v[92:95], v90, s[32:35], 0 offen %s' % x1st)
    if hint:
        a('s_cmp_lt_u32 s29, 5')
        a('s_cbranch_scc0 L_A_nohint')
        a('s_lshl_b32 s52, s28, 6')
        a('s_lshl_b32 s53, s29, 2')
        a('s_add_u32 s52, s52, s53')
        a('s_add_u32 s52, s52, %d' % HINT1)
        a('v_mov_b32 v90, s52')
        a('s_mov_b64 exec, 1')
        a('buffer_store_dword v9, v90, s[32:35], 0 offen')
        a.label('L_A_nohint')
    a('s_mov_b64 exec, -1')
    stamp(5)
    a('s_branch L_A_poll')
    a.label('L_A_none')
    a('v_mov_b32 v89, 0')
    a('v_lshlrev_b32 v15, 2, v0')
    a('ds_write_b32 v15, v89')
    a('s_waitcnt lgkmcnt(0)')
    a('s_barrier')
    a('s_waitcnt vmcnt(0)')
    if streamonly:
        stamp(2); write_stamps(0); a('s_endpgm')
    mkT()
    a.label('L_A_poll')
    if bpoll:
        stamp(7)
        write_stamps(0)
        a('s_endpgm')
    else:
        if hint:
            a('v_readfirstlane_b32 s62, v9')
            a('s_lshl_b32 s52, s28, 6')
            a('s_add_u32 s52, s52, %d' % HINT1)
            a('s_add_u32 s50, s24, s52')
            a('s_addc_u32 s51, s25, 0')
            a('s_mov_b32 s58, 0')
            a.label('L_A_hl')
            a('s_load_dwordx8 s[8:15], s[50:51], 0 glc')
            a('s_waitcnt lgkmcnt(0)')
            for k in range(5): a('s_xor_b32 s%d, s%d, s62' % (8 + k, 8 + k))
            a('s_or_b32 s8, s8, s9'); a('s_or_b32 s10, s10, s11'); a('s_or_b32 s8, s8, s12'); a('s_or_b32 s8, s8, s10')
            a('s_cbranch_scc0 L_A_hd')
            a('s_add_u32 s58, s58, 1')
            a('s_cmp_lt_u32 s58, %d' % hint)
            a('s_cbranch_scc1 L_A_hl')
            a.label('L_A_hd')
            if stamps:
                stamp(10)
                a('s_add_u32 s%d, s58, 1' % (64 + 2 * 11))
        a('s_mul_i32 s52, s28, 5')
        a('s_lshl_b32 s52, s52, 10')
        a('s_lshl_b32 s53, s27, 8')
        a('s_add_u32 s52, s52, s53')
        a('s_add_u32 s52, s52, %d' % X1Q)
        a('v_lshlrev_b32 v90, 4, v1')
        a('v_add_u32 v91, s52, v90')
        a('v_lshlrev_b32 v90, 10, v2')
        a('v_add_u32 v90, v91, v90')
        a('v_add_u32 v91, 4096, v91')
        poll('A', ['buffer_load_dwordx4 v[92:95], v90, s[32:35], %s offen', 'buffer_load_dwordx4 v[96:99], v91, s[32:35], %s offen'], (95, 99), 8, 9, x1ld, nf1)
        stamp(6)
        a('v_permlane32_swap_b32 v92, v93')
        a('v_add_f32 v92, v92, v93')
        a('v_mov_b32 v93, v92')
        a('v_permlane16_swap_b32 v92, v93')
        a('v_add_f32 v92, v92, v93')
        a('v_cmp_gt_u32 vcc, 32, v0')
        a('v_cndmask_b32 v96, v97, v96, vcc')
        a('v_add_f32 v92, v92, v96')
        a('v_cvt_pk_bf16_f32 v92, v92, v92')
        a('v_lshrrev_b32 v93, 5, v0')
        a('v_lshl_add_u32 v93, v1, 1, v93')
        a('s_lshl_b32 s52, s27, 5')
        a('v_add_u32 v93, s52, v93')
        a('v_lshlrev_b32 v93, 1, v93')
        a('ds_write_b16 v93, v92 offset:%d' % QL)
        set_flag(FLAG_Q, 91, 94)
        stamp(7)
        write_stamps(0)
        a('s_endpgm')


    a.label('L_B')
    a('s_setprio %d' % prio[1])
    a('s_lshl_b32 s52, s28, 21')
    a('s_lshl_b32 s53, s29, 16')
    a('s_add_u32 s52, s52, s53')
    a('s_add_u32 s52, s52, %d' % (6144 * 256))
    a('s_add_u32 s44, s6, s52')
    a('s_addc_u32 s45, s7, 0')
    a('s_mov_b32 s46, 65536')
    a('s_mov_b32 s47, 0x20000')
    a('s_lshl_b32 s52, s27, 10')
    a('v_add_u32 v4, s52, v3')
    if bpoll:
        a('buffer_load_dword v9, off, s[32:35], 0 sc1')
        a('s_mul_i32 s52, s28, 5')
        a('s_lshl_b32 s52, s52, 10')
        a('s_lshl_b32 s53, s27, 8')
        a('s_add_u32 s52, s52, s53')
        a('s_add_u32 s52, s52, %d' % X1Q)
        a('v_lshlrev_b32 v100, 4, v1')
        a('v_add_u32 v101, s52, v100')
        a('v_lshlrev_b32 v100, 10, v2')
        a('v_add_u32 v100, v101, v100')
        a('v_add_u32 v101, 4096, v101')
    a('s_barrier')
    a('s_mov_b32 s52, s59')
    for i in range(16):
        if wB0 and i == wB0: a('s_waitcnt vmcnt(%d)' % (wB0 - 1))
        if wB and i > (wB if wB0 else wB - 1): a('s_waitcnt vmcnt(%d)' % (wB - 1))
        a('buffer_load_dwordx4 v[%d:%d], v4, s[44:47], s52 offen %s' % (16 + 4 * i, 19 + 4 * i, ntK))
        if i < 15:
            a('s_add_u32 s52, s52, 4096')
            a('s_and_b32 s52, s52, 0xffff')
    if bpoll and not streamonly:
        def btw():
            if gateC: set_flag(FLAG_I, 6, 7)
            stamp(1)
            a('s_waitcnt vmcnt(18)')
            mkT()
        if 'nopoll1' in ablate:
            btw()
            a('s_waitcnt vmcnt(0)')
        else: poll('B', ['buffer_load_dwordx4 v[92:95], v100, s[32:35], %s offen', 'buffer_load_dwordx4 v[96:99], v101, s[32:35], %s offen'], (95, 99), 8, 9, x1ld, nf1, between=btw)
        stamp(6)
        a('v_permlane32_swap_b32 v92, v93')
        a('v_add_f32 v92, v92, v93')
        a('v_mov_b32 v93, v92')
        a('v_permlane16_swap_b32 v92, v93')
        a('v_add_f32 v92, v92, v93')
        a('v_cmp_gt_u32 vcc, 32, v0')
        a('v_cndmask_b32 v96, v97, v96, vcc')
        a('v_add_f32 v92, v92, v96')
        a('v_cvt_pk_bf16_f32 v92, v92, v92')
        a('v_lshrrev_b32 v93, 5, v0')
        a('v_lshl_add_u32 v93, v1, 1, v93')
        a('s_lshl_b32 s52, s27, 5')
        a('v_add_u32 v93, s52, v93')
        a('v_lshlrev_b32 v93, 1, v93')
        a('ds_write_b16 v93, v92 offset:%d' % QL)
        set_flag(FLAG_Q, 91, 94)
    else:
        if gateC: set_flag(FLAG_I, 6, 7)
        stamp(1)
    if streamonly:
        a('s_waitcnt vmcnt(0)'); stamp(2); write_stamps(1); a('s_endpgm')
    a('v_mov_b32 v5, 0')
    lds_wait(FLAG_Q, 84, 5)
    stamp(2)
    if 'noQK' in ablate:
        set_flag(FLAG_P, 6, 7); stamp(4); write_stamps(1); a('s_endpgm')
    a('v_lshlrev_b32 v6, 4, v1')
    a('ds_read_b128 v[80:83], v6 offset:%d' % QL)
    a('s_waitcnt lgkmcnt(0)')
    for i in range(16):
        a('s_waitcnt vmcnt(%d)' % (15 - i))
        k = 16 + 4 * i
        a('v_dot2_f32_bf16 v%d, v%d, v80, 0' % (84 + i, k))
        for r in range(1, 4):
            a('v_dot2_f32_bf16 v%d, v%d, v%d, v%d' % (84 + i, k + r, 80 + r, 84 + i))
    stamp(3)
    for i in range(8):
        a('v_add_f32_dpp v%d, v%d, v%d row_ror:8 row_mask:0xf bank_mask:0x3' % (84 + i, 84 + i, 84 + i))
        a('v_add_f32_dpp v%d, v%d, v%d row_ror:8 row_mask:0xf bank_mask:0xc' % (84 + i, 92 + i, 92 + i))
    for i in range(4):
        a('v_add_f32_dpp v%d, v%d, v%d row_half_mirror row_mask:0xf bank_mask:0x5' % (84 + i, 84 + i, 84 + i))
        a('v_add_f32_dpp v%d, v%d, v%d row_half_mirror row_mask:0xf bank_mask:0xa' % (84 + i, 88 + i, 88 + i))
    for i in range(4):
        a('v_add_f32_dpp v%d, v%d, v%d quad_perm:[2,3,0,1] row_mask:0xf bank_mask:0xf' % (88 + i, 84 + i, 84 + i))
    a('v_and_b32 v6, 2, v0')
    a('v_cmp_eq_u32 vcc, 0, v6')
    a('v_cndmask_b32 v84, v90, v88, vcc')
    a('v_cndmask_b32 v85, v91, v89, vcc')
    a('v_and_b32 v6, 1, v0')
    a('v_add_f32_dpp v88, v84, v84 quad_perm:[1,0,3,2] row_mask:0xf bank_mask:0xf')
    a('v_add_f32_dpp v89, v85, v85 quad_perm:[1,0,3,2] row_mask:0xf bank_mask:0xf')
    a('v_cmp_eq_u32 vcc, 0, v6')
    a('v_cndmask_b32 v84, v89, v88, vcc')
    a('v_cvt_pk_bf16_f32 v84, v84, v84')
    a('v_and_b32 v84, 0xffff0000, v84')
    a('v_mul_f32 v84, 0x%x, v84' % SCALE)
    a('v_cvt_pk_bf16_f32 v84, v84, v84')
    a('v_and_b32 v84, 0xffff0000, v84')
    a('v_mov_b32 v85, v84')
    allreduce('v_max_f32', 85, 86)
    a('v_sub_f32 v86, v84, v85')
    a('v_mul_f32 v86, 0x%x, v86' % LOG2E)
    a('v_exp_f32 v86, v86')
    a('v_cvt_pk_bf16_f32 v87, v86, v86')
    a('s_lshl_b32 s52, s27, 8')
    a('v_lshlrev_b32 v6, 2, v0')
    a('v_add_u32 v6, s52, v6')
    a('ds_write_b32 v6, v87 offset:%d' % PL)
    allreduce('v_add_f32', 86, 88)
    a('v_mov_b32 v88, v85')
    a('v_mov_b32 v89, v86')
    a('s_lshl_b32 s52, s27, 3')
    a('v_mov_b32 v6, s52')
    a('ds_write_b64 v6, v[88:89] offset:%d' % ML)
    set_flag(FLAG_P, 6, 7)
    stamp(4)
    write_stamps(1)
    a('s_endpgm')

    a.label('L_CD')
    a('s_setprio %d' % prio[2])
    a('buffer_load_dword v9, off, s[32:35], 0 sc1')
    srd(36, 's4', 's5', 1280)
    a('s_lshl_b32 s52, s2, 3')
    a('v_and_b32 v7, 1, v0')
    a('v_lshlrev_b32 v7, 2, v7')
    a('v_add_u32 v10, s52, v7')
    a('buffer_load_dword v8, v10, s[36:39], 0 offen')
    a('s_lshl_b32 s52, s28, 21')
    a('s_lshl_b32 s53, s29, 16')
    a('s_add_u32 s52, s52, s53')
    a('s_add_u32 s52, s52, %d' % (6144 * 256))
    a('s_add_u32 s44, s8, s52')
    a('s_addc_u32 s45, s9, 0')
    a('s_mov_b32 s46, 65536')
    a('s_mov_b32 s47, 0x20000')
    a('s_lshl_b32 s52, s27, 10')
    a('v_add_u32 v4, s52, v3')
    a('s_cmp_lt_u32 s29, 5')
    a('s_cbranch_scc0 L_C_ffn')
    a('s_mul_i32 s52, s28, %d' % (128 * 1280))
    a('s_lshl_b32 s53, s29, 8')
    a('s_add_u32 s52, s52, s53')
    a('s_add_u32 s40, s12, s52')
    a('s_addc_u32 s41, s13, 0')
    a('s_sub_u32 s42, 5242880, s52')
    a('s_mov_b32 s43, 0x20000')
    a('s_mul_i32 s52, s27, %d' % (32 * 1280))
    a('v_mul_u32_u24 v5, %d, v2' % (8 * 1280))
    a('v_lshlrev_b32 v6, 4, v1')
    a('v_add3_u32 v5, v5, v6, s52')
    a('v_add_u32 v6, 5120, v5')
    a('s_branch L_C_go')
    a.label('L_C_ffn')
    a('s_min_u32 s54, s28, 26')
    a('s_mul_i32 s52, s54, %d' % (64 * 1280))
    a('s_lshl_b32 s53, s30, 9')
    a('s_add_u32 s52, s52, s53')
    a('s_add_u32 s40, s18, s52')
    a('s_addc_u32 s41, s19, 0')
    a('s_sub_u32 s42, 2211840, s52')
    a('s_mov_b32 s43, 0x20000')
    a('s_mul_i32 s52, s27, %d' % (16 * 1280))
    a('v_mul_u32_u24 v5, %d, v2' % (4 * 1280))
    a('v_lshlrev_b32 v6, 4, v1')
    a('v_add3_u32 v5, v5, v6, s52')
    a('v_add_u32 v6, 256, v5')
    a('s_cmp_eq_u32 s30, 2')
    a('s_cbranch_scc0 L_C_f1')
    a('v_mov_b32 v6, 0x7ff00000')
    a.label('L_C_f1')
    a('s_cmp_ge_u32 s28, 27')
    a('s_cbranch_scc0 L_C_go')
    a('v_mov_b32 v5, 0x7ff00000')
    a('v_mov_b32 v6, 0x7ff00000')
    a.label('L_C_go')
    a('s_barrier')
    if gateC:
        L = a.newlabel('L_gw'); D = a.newlabel('L_gd')
        a('s_lshl_b32 s52, s27, 2')
        a('v_mov_b32 v11, s52')
        a('s_mov_b32 s58, %d' % SPIN_LDS)
        a.label(L)
        a('ds_read_b32 v12, v11 offset:%d' % FLAG_I)
        a('s_waitcnt lgkmcnt(0)')
        a('v_cmp_ne_u32 vcc, 0, v12')
        a('s_cbranch_vccnz %s' % D)
        a('s_sub_u32 s58, s58, 1')
        a('s_cbranch_scc1 %s' % D)
        a('s_sleep 1')
        a('s_branch %s' % L)
        a.label(D)
    def prewrite(which):
        for r in range(148, 152): a('v_mov_b32 v%d, 0' % r)
        if which in pre2.split():
            X = a.newlabel('L_p2')
            a('s_cmp_lg_u32 s27, 0'); a('s_cbranch_scc1 %s' % X)
            a('s_lshl_b32 s52, s28, 3'); a('s_add_u32 s52, s52, s29'); a('s_lshl_b32 s52, s52, 10'); a('s_add_u32 s52, s52, %d' % X2)
            a('v_add_u32 v152, s52, v3')
            a('buffer_store_dwordx4 v[148:151], v152, s[32:35], 0 offen')
            a.label(X)
        if which in pre3.split():
            X = a.newlabel('L_p3'); Y = a.newlabel('L_p3f'); Z = a.newlabel('L_p3g')
            a('s_and_b32 s52, s27, 1'); a('s_cmp_lg_u32 s52, 0'); a('s_cbranch_scc1 %s' % X)
            a('s_cmp_lt_u32 s29, 5'); a('s_cbranch_scc0 %s' % Y)
            a('s_cmp_lg_u32 s27, 0'); a('s_cbranch_scc1 %s' % X)
            a('s_lshl_b32 s52, s29, 5'); a('s_add_u32 s52, s52, s28'); a('s_lshl_b32 s52, s52, 10'); a('s_add_u32 s52, s52, %d' % X3A)
            a('s_branch %s' % Z)
            a.label(Y)
            a('s_cmp_ge_u32 s28, 27'); a('s_cbranch_scc1 %s' % X)
            a('s_lshr_b32 s53, s27, 1')
            a('s_lshl_b32 s52, s30, 1'); a('s_add_u32 s52, s52, s53')
            a('s_cmp_ge_u32 s52, 5'); a('s_cbranch_scc1 %s' % X)
            a('s_lshl_b32 s52, s52, 5'); a('s_add_u32 s52, s52, s28'); a('s_lshl_b32 s52, s52, 10'); a('s_add_u32 s52, s52, %d' % X3F)
            a.label(Z)
            a('v_add_u32 v152, s52, v3')
            a('buffer_store_dwordx4 v[148:151], v152, s[32:35], 0 offen sc1')
            a.label(X)
    if 'early' in (pre2 + ' ' + pre3): prewrite('early')
    if dfirst:
        for j in range(8):
            if wC and j >= wC: a('s_waitcnt vmcnt(%d)' % (wC - 1))
            a('buffer_load_dwordx4 v[%d:%d], v%d, s[40:43], 0 offen offset:%d %s' % (80 + 4 * j, 83 + 4 * j, 5 if j < 4 else 6, (j % 4) * 1280, ntD))
    a('s_mov_b32 s52, s59')
    for i in range(16):
        if wC and (i + (8 if dfirst else 0)) >= wC: a('s_waitcnt vmcnt(%d)' % (wC - 1))
        a('buffer_load_dwordx4 v[%d:%d], v4, s[44:47], s52 offen %s' % (16 + 4 * i, 19 + 4 * i, ntV))
        if i < 15:
            a('s_add_u32 s52, s52, 4096')
            a('s_and_b32 s52, s52, 0xffff')
    if 'late' in (pre2 + ' ' + pre3): prewrite('late')
    def issue_D(j):
        if wC: a('s_waitcnt vmcnt(%d)' % (wC - 1))
        a('buffer_load_dwordx4 v[%d:%d], v%d, s[40:43], 0 offen offset:%d %s' % (80 + 4 * j, 83 + 4 * j, 5 if j < 4 else 6, (j % 4) * 1280, ntD))
    def read_p():
        a('s_lshl_b32 s52, s27, 8')
        a('v_lshlrev_b32 v12, 6, v2')
        a('v_add_u32 v12, s52, v12')
        for k in range(4):
            a('ds_read_b128 v[%d:%d], v12 offset:%d' % (112 + 4 * k, 115 + 4 * k, PL + 16 * k))
        a('ds_read_b128 v[148:151], v11 offset:%d' % ML)
        a('ds_read_b128 v[152:155], v11 offset:%d' % (ML + 16))
        a('s_waitcnt lgkmcnt(0)')
        a('v_max_f32 v156, v148, v150'); a('v_max_f32 v157, v152, v154'); a('v_max_f32 v156, v156, v157')
        for k in range(4):
            a('v_sub_f32 v%d, v%d, v156' % (148 + 2 * k, 148 + 2 * k))
        for k in range(4):
            a('v_mul_f32 v%d, 0x%x, v%d' % (148 + 2 * k, LOG2E, 148 + 2 * k))
        for k in range(4):
            a('v_exp_f32 v%d, v%d' % (148 + 2 * k, 148 + 2 * k))
        a('v_mul_f32 v157, v148, v149')
        a('v_fmac_f32 v157, v150, v151'); a('v_fmac_f32 v157, v152, v153'); a('v_fmac_f32 v157, v154, v155')
        a('v_mov_b32 v158, v148')
        for k in range(1, 4):
            a('s_cmp_eq_u32 s27, %d' % k)
            a('s_cselect_b64 vcc, -1, 0')
            a('v_cndmask_b32 v158, v158, v%d, vcc' % (148 + 2 * k))
    def aop(i):
        b = 132 + 4 * (i & 1)
        for r in range(4):
            a('v_and_b32 v%d, v%d, v%d' % (b + r, 112 + i, 128 + r))
    def pv(i, younger):
        a('s_waitcnt vmcnt(%d)' % younger)
        b = 132 + 4 * (i & 1)
        a('v_mfma_f32_16x16x32_bf16 v[140:143], v[%d:%d], v[%d:%d], %s' % (b, b + 3, 16 + 4 * i, 19 + 4 * i, '0' if i == 0 else 'v[140:143]'))
    a('v_mov_b32 v11, 0')
    if streamonly:
        if not dfirst:
            for j in range(8): issue_D(j)
        stamp(1)
        a('s_waitcnt vmcnt(8)'); stamp(2); a('s_waitcnt vmcnt(0)'); stamp(3); write_stamps(2); a('s_endpgm')
    masks(128, 148)
    if ilv:
        a('ds_read_b128 v[148:151], v11 offset:%d' % FLAG_P)
        a('s_waitcnt lgkmcnt(0)')
        a('v_and_b32 v148, v148, v149'); a('v_and_b32 v150, v150, v151'); a('v_and_b32 v148, v148, v150')
        a('v_cmp_ne_u32 vcc, 0, v148')
        a('s_cbranch_vccz L_C_late')
        stamp(2)
        read_p()
        for j in range(8):
            issue_D(j)
            aop(2 * j); aop(2 * j + 1)
            pv(2 * j, 15 - 2 * j + j + 1)
            pv(2 * j + 1, 15 - (2 * j + 1) + j + 1)
        stamp(1)
        a('s_branch L_C_pvdone')
        a.label('L_C_late')
    if not dfirst:
        for j in range(8): issue_D(j)
    stamp(1)
    lds_wait(FLAG_P, 148, 11)
    stamp(2)
    read_p()
    aop(0)
    for i in range(16):
        if i < 15: aop(i + 1)
        pv(i, (0 if dfirst else 8) + 15 - i)
    a.label('L_C_pvdone')
    stamp(3)
    mkT()
    a('v_lshlrev_b32 v12, 5, v1')
    a('v_and_b32 v13, 16, v0')
    a('s_lshl_b32 s52, s27, 9')
    a('v_add3_u32 v12, v12, v13, s52')
    for r in range(4):
        a('v_mul_f32 v%d, v%d, v158' % (140 + r, 140 + r))
    a('s_mov_b32 exec_lo, -1'); a('s_mov_b32 exec_hi, 0')
    a('ds_write_b128 v12, v[140:143] offset:%d' % PVP)
    a('s_mov_b64 exec, -1')
    a('s_waitcnt lgkmcnt(0)')
    a('s_barrier')
    a('s_cmp_lg_u32 s27, 0')
    a('s_cbranch_scc1 L_C_x2done')
    a('v_and_b32 v12, 31, v0')
    a('v_lshlrev_b32 v12, 4, v12')
    for w in range(4):
        a('ds_read_b128 v[%d:%d], v12 offset:%d' % (16 + 4 * w, 19 + 4 * w, PVP + 512 * w))
    a('s_lshl_b32 s52, s28, 3')
    a('s_add_u32 s52, s52, s29')
    a('s_lshl_b32 s52, s52, 10')
    a('s_add_u32 s52, s52, %d' % X2)
    a('v_add_u32 v13, s52, v3')
    a('v_cmp_gt_u32 vcc, 32, v0')
    a('s_waitcnt lgkmcnt(0)')
    for r in range(4):
        a('v_add_f32 v%d, v%d, v%d' % (16 + r, 16 + r, 20 + r))
        a('v_add_f32 v%d, v%d, v%d' % (24 + r, 24 + r, 28 + r))
    for r in range(4):
        a('v_add_f32 v%d, v%d, v%d' % (16 + r, 16 + r, 24 + r))
    a('v_cndmask_b32 v20, v19, v16, vcc')
    a('v_cndmask_b32 v21, v156, v17, vcc')
    a('v_cndmask_b32 v22, v157, v18, vcc')
    a('v_mov_b32 v23, v9')
    if dual:
        a('buffer_store_dwordx4 v[20:23], v13, s[32:35], 0 offen')
        a('s_mov_b32 s52, %d' % BOFF)
        a('buffer_store_dwordx4 v[20:23], v13, s[32:35], s52 offen sc1')
    else:
        a('buffer_store_dwordx4 v[20:23], v13, s[32:35], 0 offen %s' % x2st)
    a.label('L_C_x2done')
    if pbar: a('s_barrier')
    stamp(4)
    a('s_cmp_lt_u32 s29, 5')
    a('s_cbranch_scc0 L_D_ffn')
    a('v_and_b32 v12, 7, v0')
    a('v_lshlrev_b32 v12, 10, v12')
    a('v_lshrrev_b32 v13, 3, v0')
    a('v_lshlrev_b32 v13, 4, v13')
    a('s_lshl_b32 s52, s28, 13')
    a('s_lshl_b32 s53, s27, 7')
    a('s_add_u32 s52, s52, s53')
    a('s_add_u32 s52, s52, %d' % X2)
    a('v_add3_u32 v12, v12, v13, s52')
    if x2wait is not None:
        def ld(base):
            a('buffer_load_dwordx4 v[%d:%d], v12, s[32:35], s61 offen %s' % (base, base + 3, x2ld))
            a('buffer_load_dwordx4 v[%d:%d], v12, s[32:35], s61 offen offset:512 %s' % (base + 4, base + 7, x2ld))
        def chk(base, lab):
            a('v_cmp_ne_u32 vcc, v%d, v9' % (base + 3))
            a('v_cmp_ne_u32 s[52:53], v%d, v9' % (base + 7))
            a('s_or_b64 vcc, vcc, s[52:53]')
            a('s_cbranch_vccz %s' % lab)
        a('s_mov_b32 s58, 0')
        a('s_mov_b32 s61, %d' % (0 if (nf2 or not dual) else BOFF))
        a('s_waitcnt vmcnt(%d)' % x2wait)
        sets = (56, 64, 72)
        ld(56); a('s_sleep %d' % x2d); ld(64); a('s_sleep %d' % x2d)
        a.label('L_D_pl')
        ld(72)
        a('s_waitcnt vmcnt(4)')
        if stamps:
            X = a.newlabel('L_nf')
            a('s_cmp_eq_u32 s58, 0'); a('s_cbranch_scc0 %s' % X); stamp(10); a.label(X)
        chk(56, 'L_D_ok0')
        ld(56)
        a('s_waitcnt vmcnt(4)')
        chk(64, 'L_D_ok1')
        ld(64)
        a('s_waitcnt vmcnt(4)')
        chk(72, 'L_D_ok2')
        a('s_add_u32 s58, s58, 1')
        if dual and nf2:
            a('s_cmp_ge_u32 s58, %d' % nf2)
            a('s_cselect_b32 s61, %d, 0' % BOFF)
        a('s_cmp_lt_u32 s58, %d' % SPIN_MEM)
        a('s_cbranch_scc1 L_D_pl')
        for k, base in ((2, 72), (1, 64), (0, 56)):
            a.label('L_D_ok%d' % k)
            for j, r in enumerate((16, 17, 18, 20, 21, 22)): a('v_mov_b32 v%d, v%d' % (r, base + (0, 1, 2, 4, 5, 6)[j]))
            if k: a('s_branch L_D_pd')
        a.label('L_D_pd')
        if stamps: a('s_add_u32 s%d, s58, 1' % (64 + 2 * 11))
    elif x2pipe:
        def ld(base):
            a('buffer_load_dwordx4 v[%d:%d], v12, s[32:35], s61 offen %s' % (base, base + 3, x2ld))
            a('buffer_load_dwordx4 v[%d:%d], v12, s[32:35], s61 offen offset:512 %s' % (base + 4, base + 7, x2ld))
        def chk(base, lab):
            a('v_cmp_ne_u32 vcc, v%d, v9' % (base + 3))
            a('v_cmp_ne_u32 s[52:53], v%d, v9' % (base + 7))
            a('s_or_b64 vcc, vcc, s[52:53]')
            a('s_cbranch_vccz %s' % lab)
        a('s_mov_b32 s58, 0')
        a('s_mov_b32 s61, %d' % (0 if (nf2 or not dual) else BOFF))
        ld(56)
        a('s_sleep %d' % x2pipe)
        a.label('L_D_pl')
        ld(64)
        a('s_waitcnt vmcnt(2)')
        if stamps:
            X = a.newlabel('L_nf')
            a('s_cmp_eq_u32 s58, 0'); a('s_cbranch_scc0 %s' % X); stamp(10); a.label(X)
        chk(56, 'L_D_ok0')
        ld(56)
        a('s_waitcnt vmcnt(2)')
        chk(64, 'L_D_ok1')
        a('s_add_u32 s58, s58, 1')
        if dual and nf2:
            a('s_cmp_ge_u32 s58, %d' % nf2)
            a('s_cselect_b32 s61, %d, 0' % BOFF)
        a('s_cmp_lt_u32 s58, %d' % SPIN_MEM)
        a('s_cbranch_scc1 L_D_pl')
        a.label('L_D_ok1')
        for k, r in enumerate((16, 17, 18, 20, 21, 22)): a('v_mov_b32 v%d, v%d' % (r, 64 + (0, 1, 2, 4, 5, 6)[k]))
        a('s_branch L_D_pd')
        a.label('L_D_ok0')
        for k, r in enumerate((16, 17, 18, 20, 21, 22)): a('v_mov_b32 v%d, v%d' % (r, 56 + (0, 1, 2, 4, 5, 6)[k]))
        a.label('L_D_pd')
        if stamps: a('s_add_u32 s%d, s58, 1' % (64 + 2 * 11))
    else:
        poll('D', ['buffer_load_dwordx4 v[16:19], v12, s[32:35], %s offen', 'buffer_load_dwordx4 v[20:23], v12, s[32:35], %s offen offset:512'], (19, 23), 10, 11, x2ld, nf2)
    stamp(5)
    def red8(op, v):
        return ['%s_dpp v%d, v%d, v%d row_half_mirror row_mask:0xf bank_mask:0xf' % (op, v, v, v),
                '%s_dpp v%d, v%d, v%d quad_perm:[1,0,3,2] row_mask:0xf bank_mask:0xf' % (op, v, v, v),
                '%s_dpp v%d, v%d, v%d quad_perm:[2,3,0,1] row_mask:0xf bank_mask:0xf' % (op, v, v, v)]
    a('v_mov_b32 v24, v21')
    for s_ in red8('v_max_f32', 24): a(s_)
    a('v_sub_f32 v21, v21, v24')
    a('v_mul_f32 v21, 0x%x, v21' % LOG2E)
    a('v_exp_f32 v21, v21')
    vals = (22, 16, 17, 18, 20)
    for v in vals: a('v_mul_f32 v%d, v%d, v21' % (v, v))
    for st in range(3):
        for v in vals: a(red8('v_add_f32', v)[st])
    a('v_rcp_f32 v22, v22')
    for v in vals[1:]: a('v_mul_f32 v%d, v%d, v22' % (v, v))
    for v in vals[1:]: a('v_cvt_pk_bf16_f32 v%d, v%d, v%d' % (v, v, v))
    ov = (16, 17, 18, 20)
    for i in range(8):
        for r in range(4):
            if i < 4: a('v_and_b32 v%d, v%d, v%d' % (24 + 4 * i + r, ov[i], 128 + r))
            else: a('v_and_b32_dpp v%d, v%d, v%d row_ror:8 row_mask:0xf bank_mask:0xf' % (24 + 4 * i + r, ov[i - 4], 128 + r))
    for i in range(8):
        a('v_mfma_f32_16x16x32_bf16 v[140:143], v[%d:%d], v[%d:%d], %s' % (24 + 4 * i, 27 + 4 * i, 80 + 4 * i, 83 + 4 * i, '0' if i == 0 else 'v[140:143]'))
    a('s_lshl_b32 s60, s29, 5')
    a('s_add_u32 s60, s60, s28')
    a('s_lshl_b32 s60, s60, 10')
    a('s_add_u32 s60, s60, %d' % X3A)
    a('s_mov_b32 s61, 1')
    a('s_branch L_D_red')
    a.label('L_D_ffn')
    a('s_cmp_ge_u32 s28, 27')
    a('s_cbranch_scc1 L_final')
    a('v_and_b32 v12, 3, v0')
    a('v_min_u32 v13, 2, v12')
    a('v_lshlrev_b32 v13, 10, v13')
    a('v_lshlrev_b32 v14, 5, v2')
    a('s_mul_i32 s52, s28, 3072')
    a('s_lshl_b32 s53, s27, 7')
    a('s_add_u32 s52, s52, s53')
    a('s_add_u32 s52, s52, %d' % X1H)
    a('v_add3_u32 v13, v13, v14, s52')
    poll('F', ['buffer_load_dwordx4 v[16:19], v13, s[32:35], %s offen', 'buffer_load_dwordx4 v[20:23], v13, s[32:35], %s offen offset:16'], (19, 23), 10, 11, x1ld, nfh)
    stamp(5)
    a('v_cmp_gt_u32 vcc, 3, v12')
    hv = (16, 17, 20, 21)
    for v in hv: a('v_cndmask_b32 v%d, 0, v%d, vcc' % (v, v))
    for v in hv: a('v_add_f32_dpp v%d, v%d, v%d quad_perm:[1,0,3,2] row_mask:0xf bank_mask:0xf' % (v, v, v))
    for v in hv: a('v_add_f32_dpp v%d, v%d, v%d quad_perm:[2,3,0,1] row_mask:0xf bank_mask:0xf' % (v, v, v))
    for v in hv: a('v_cvt_pk_bf16_f32 v%d, v%d, v%d' % (v, v, v))
    for v in hv: a('v_and_b32 v%d, 0xffff0000, v%d' % (v, v))
    for k, v in enumerate(hv): a('v_mul_f32 v%d, 0x%x, v%d' % (24 + k, LOG2E ^ 0x80000000, v))
    for k in range(4): a('v_exp_f32 v%d, v%d' % (24 + k, 24 + k))
    for k in range(4): a('v_add_f32 v%d, 1.0, v%d' % (24 + k, 24 + k))
    for k in range(4): a('v_rcp_f32 v%d, v%d' % (24 + k, 24 + k))
    for k, v in enumerate(hv): a('v_mul_f32 v%d, v%d, v%d' % (v, v, 24 + k))
    for v in hv: a('v_cvt_pk_bf16_f32 v%d, v%d, v%d' % (v, v, v))
    for i in range(4):
        for r in range(4):
            a('v_and_b32 v%d, v%d, v%d' % (24 + 4 * i + r, hv[i], 128 + r))
    for i in range(4):
        a('v_mfma_f32_16x16x32_bf16 v[140:143], v[%d:%d], v[%d:%d], %s' % (24 + 4 * i, 27 + 4 * i, 80 + 4 * i, 83 + 4 * i, '0' if i == 0 else 'v[140:143]'))
        a('v_mfma_f32_16x16x32_bf16 v[144:147], v[%d:%d], v[%d:%d], %s' % (24 + 4 * i, 27 + 4 * i, 96 + 4 * i, 99 + 4 * i, '0' if i == 0 else 'v[144:147]'))
    a('s_lshl_b32 s60, s30, 6')
    a('s_add_u32 s60, s60, s28')
    a('s_lshl_b32 s60, s60, 10')
    a('s_add_u32 s60, s60, %d' % X3F)
    a('s_cmp_eq_u32 s30, 2')
    a('s_cselect_b32 s61, 1, 2')
    a.label('L_D_red')
    a('v_lshlrev_b32 v12, 5, v1')
    a('v_and_b32 v13, 16, v0')
    a('s_lshl_b32 s52, s27, 10')
    a('v_add3_u32 v12, v12, v13, s52')
    a('s_nop 7')
    a('s_mov_b32 exec_lo, -1'); a('s_mov_b32 exec_hi, 0')
    a('ds_write_b128 v12, v[140:143] offset:%d' % FIN)
    a('s_cmp_eq_u32 s61, 2')
    a('s_cbranch_scc0 L_D_w1')
    a('ds_write_b128 v12, v[144:147] offset:%d' % (FIN + 512))
    a.label('L_D_w1')
    a('s_mov_b64 exec, -1')
    a('s_waitcnt lgkmcnt(0)')
    a('s_barrier')
    stamp(6)
    a('s_and_b32 s52, s27, 1')
    a('s_cmp_lg_u32 s52, 0')
    a('s_cbranch_scc1 L_final')
    a('s_lshr_b32 s52, s27, 1')
    a('s_cmp_ge_u32 s52, s61')
    a('s_cbranch_scc1 L_final')
    a('s_lshl_b32 s53, s52, 9')
    a('v_lshlrev_b32 v12, 3, v0')
    a('v_add_u32 v12, s53, v12')
    for w in range(4):
        a('ds_read_b64 v[%d:%d], v12 offset:%d' % (16 + 2 * w, 17 + 2 * w, FIN + 1024 * w))
    a('s_lshl_b32 s53, s52, 15')
    a('s_add_u32 s53, s53, s60')
    a('v_add_u32 v13, s53, v3')
    a('s_waitcnt lgkmcnt(0)')
    a('v_add_f32 v16, v16, v18'); a('v_add_f32 v17, v17, v19')
    a('v_add_f32 v20, v20, v22'); a('v_add_f32 v21, v21, v23')
    a('v_add_f32 v16, v16, v20'); a('v_add_f32 v17, v17, v21')
    a('v_mov_b32 v18, 0')
    a('v_mov_b32 v19, v9')
    a('buffer_store_dwordx4 v[16:19], v13, s[32:35], 0 offen %s' % x3st)
    stamp(7)
    a.label('L_final')
    a('s_cmp_lt_u32 s2, 160')
    a('s_cbranch_scc0 L_CD_end')
    absent = [w for w in range(4) if w not in rpoll]
    for w in absent:
        a('s_cmp_eq_u32 s27, %d' % w)
        a('s_cbranch_scc1 L_CD_end')
    for w, d in rpoll.items():
        if d:
            X = a.newlabel('L_rs')
            a('s_cmp_eq_u32 s27, %d' % w)
            a('s_cbranch_scc0 %s' % X)
            a('s_sleep %d' % d)
            a.label(X)
    a('s_lshr_b32 s52, s2, 5')
    a('s_and_b32 s53, s2, 31')
    a('s_lshl_b32 s52, s52, 15')
    a('s_lshl_b32 s53, s53, 5')
    a('s_add_u32 s52, s52, s53')
    a('v_lshrrev_b32 v12, 1, v0')
    a('v_and_b32 v13, 1, v0')
    a('v_lshlrev_b32 v13, 4, v13')
    a('v_add_u32 v13, s52, v13')
    a('v_min_u32 v14, 26, v12')
    a('v_lshlrev_b32 v14, 10, v14')
    a('v_lshlrev_b32 v15, 10, v12')
    a('v_add_u32 v14, v14, v13')
    a('v_add_u32 v15, v15, v13')
    a('v_add_u32 v14, 0x%x, v14' % X3F)
    a('v_add_u32 v15, 0x%x, v15' % X3A)
    poll('R', ['buffer_load_dwordx4 v[16:19], v15, s[32:35], %s offen', 'buffer_load_dwordx4 v[20:23], v14, s[32:35], %s offen'], (19, 23), 12, 13, x3ld, 0)
    stamp(8)
    a('v_cmp_gt_u32 vcc, 27, v12')
    a('v_cndmask_b32 v20, 0, v20, vcc')
    a('v_cndmask_b32 v21, 0, v21, vcc')
    fv = (16, 17, 20, 21)
    for r in (2, 4, 8):
        for v in fv: a('v_add_f32_dpp v%d, v%d, v%d row_ror:%d row_mask:0xf bank_mask:0xf' % (v, v, v, r))
    for k, v in enumerate(fv): a('v_mov_b32 v%d, v%d' % (24 + k, v))
    for k, v in enumerate(fv): a('v_permlane16_swap_b32 v%d, v%d' % (v, 24 + k))
    for k, v in enumerate(fv): a('v_add_f32 v%d, v%d, v%d' % (v, v, 24 + k))
    for k, v in enumerate(fv): a('v_mov_b32 v%d, v%d' % (24 + k, v))
    for k, v in enumerate(fv): a('v_permlane32_swap_b32 v%d, v%d' % (v, 24 + k))
    for k, v in enumerate(fv): a('v_add_f32 v%d, v%d, v%d' % (v, v, 24 + k))
    a('v_cvt_pk_bf16_f32 v16, v16, v17')
    a('v_cvt_pk_bf16_f32 v20, v20, v21')
    a('v_lshlrev_b32 v24, 16, v8'); a('v_and_b32 v25, 0xffff0000, v8')
    a('v_lshlrev_b32 v26, 16, v16'); a('v_and_b32 v27, 0xffff0000, v16')
    a('v_add_f32 v24, v24, v26'); a('v_add_f32 v25, v25, v27')
    a('v_cvt_pk_bf16_f32 v24, v24, v25')
    a('v_lshlrev_b32 v26, 16, v20'); a('v_and_b32 v27, 0xffff0000, v20')
    a('v_lshlrev_b32 v28, 16, v24'); a('v_and_b32 v29, 0xffff0000, v24')
    a('v_add_f32 v26, v26, v28'); a('v_add_f32 v27, v27, v29')
    a('v_cvt_pk_bf16_f32 v26, v26, v27')
    srd(48, 's20', 's21', 1280)
    a('s_mov_b64 exec, 3')
    a('buffer_store_dword v26, v10, s[48:51], 0 offen')
    a('s_cmp_eq_u32 s2, 0')
    a('s_cbranch_scc0 L_CD_end')
    a('s_mov_b64 exec, 1')
    a('buffer_store_dword v9, off, s[32:35], 0 sc1')
    a.label('L_CD_end')
    stamp(9)
    write_stamps(2)
    a.label('L_end')
    a('s_endpgm')
    lines = hazard.fix(a.lines)
    return wrap('\n'.join(lines) + '\n', 256, 768, LDS_BYTES, 160, sgpr=100)

if __name__ == '__main__':
    out = sys.argv[1] if len(sys.argv) > 1 else 'k.s'
    kw = {}
    for arg in sys.argv[2:]:
        k, v = arg.split('=')
        kw[k] = eval(v)
    open(out, 'w').write(gen(**kw))
```
